```python
import torch

def _softmax(x, axis=-1):
    return torch.softmax(x, dim=axis)

def _gelu(x):
    return torch.nn.functional.gelu(x, approximate='tanh')

def _silu(x):
    return torch.nn.functional.silu(x)

def _sigmoid(x):
    return torch.sigmoid(x)

def _layernorm(x, axis=-1, eps=1e-05):
    m = x.mean(dim=axis, keepdim=True)
    v = x.var(dim=axis, keepdim=True, unbiased=False)
    return (x - m) / torch.sqrt(v + eps)

def _scatter_add(tgt, idx, src, axis=0):
    return tgt.clone().index_add_(axis, idx, src)

def _segment_sum(src, seg, n):
    out = torch.zeros((n,) + src.shape[1:], dtype=src.dtype)
    return out.index_add_(0, seg, src)

def _pad(x, pw):
    flat = tuple((v for pair in reversed(pw) for v in pair))
    return torch.nn.functional.pad(x, flat)
kernel_name = 'gated_mix__sliding_block__memory_aug_recurrent_mem_tr__prompt'

def setup_inputs():

    _w = lambda a: (lambda t: t.to(torch.bfloat16) if t.is_floating_point() else t)(torch.as_tensor(a))

    def _A_setup():
        B, S, D = (1, 2048, 512)
        return {'x': _w((lambda *s: torch.randn(*s, dtype=torch.bfloat16) * 0.05)(B, S, D)), 'wqkv': _w((lambda *s: torch.randn(*s, dtype=torch.bfloat16) * 1.6)(D, 3 * D)), 'wo': _w((lambda *s: torch.randn(*s, dtype=torch.bfloat16) * 0.05)(D, D))}
    _A_in = _A_setup()

    def _B_setup():
        B, S, Dm = (1, 2048, 512)
        H, Dh = (32, 128)
        M, seg = (8, 32)
        seg = min(seg, S)
        S = S // seg * seg
        return {'x': _w((lambda *s: torch.randn(*s, dtype=torch.bfloat16) * 0.05)(B, S, Dm)), 'mem0': _w((lambda *s: torch.randn(*s, dtype=torch.bfloat16) * 1.6)(B, M, Dm)), 'Wq': _w((lambda *s: torch.randn(*s, dtype=torch.bfloat16) * 0.8)(Dm, H, Dh) * Dm ** (-0.5)), 'Wk': _w((lambda *s: torch.randn(*s, dtype=torch.bfloat16) * 0.8)(Dm, H, Dh) * Dm ** (-0.5)), 'Wv': _w((lambda *s: torch.randn(*s, dtype=torch.bfloat16) * 1.6)(Dm, H, Dh) * Dm ** (-0.5)), 'Wo': _w((lambda *s: torch.randn(*s, dtype=torch.bfloat16) * 1.6)(H, Dh, Dm) * (H * Dh) ** (-0.5)), 'seg_len': seg}
    _B_in = _B_setup()
    return {'A_x': _A_in['x'], 'A_wqkv': _A_in['wqkv'], 'A_wo': _A_in['wo'], 'B_x': _B_in['x'], 'B_mem0': _B_in['mem0'], 'B_Wq': _B_in['Wq'], 'B_Wk': _B_in['Wk'], 'B_Wv': _B_in['Wv'], 'B_Wo': _B_in['Wo'], 'B_seg_len': _B_in['seg_len'], 'gate_w': _w((lambda *s: torch.randn(*s, dtype=torch.bfloat16) * 0.05)(512) * 16.0)}

def reference(A_x, A_wqkv, A_wo, B_x, B_mem0, B_Wq, B_Wk, B_Wv, B_Wo, B_seg_len, gate_w):

    def _A_ref(x, wqkv, wo):
        B, S, D = x.shape
        H = 32
        Dh = D // H
        W = 256
        qkv = (lambda x, *d: x.permute(*d))((x @ wqkv).reshape(B, S, 3, H, Dh), 2, 0, 3, 1, 4)
        q, k, v = (qkv[0], qkv[1], qkv[2])
        scores = torch.einsum('bhqd,bhkd->bhqk', q, k) * Dh ** (-0.5)
        idx = torch.arange(S)
        mask = (idx[:, None] - idx[None, :] >= 0) & (idx[:, None] - idx[None, :] < W)
        scores = torch.where(mask[None, None], scores, -1000000000.0)
        p = _softmax(scores, axis=-1)
        o = torch.einsum('bhqk,bhkd->bhqd', p, v)
        return (lambda x, *d: x.permute(*d))(o, 0, 2, 1, 3).reshape(B, S, D) @ wo

    def _B_ref(x, mem0, Wq, Wk, Wv, Wo, seg_len):
        B, S, Dm = x.shape
        H, Dh = (Wq.shape[1], Wq.shape[2])
        M = mem0.shape[1]
        scale = Dh ** (-0.5)
        n_seg = S // seg_len
        L = M + seg_len
        idx = torch.arange(L)
        mask = (idx[:, None] < M) | (idx[:, None] >= idx[None, :])
        mem = mem0
        outs = []
        for s in range(n_seg):
            xs = x[:, s * seg_len:(s + 1) * seg_len, :].clone()
            h = torch.concatenate([mem, xs], axis=1)
            q = torch.einsum('btd,dhe->bhte', h, Wq)
            k = torch.einsum('btd,dhe->bhte', h, Wk)
            v = torch.einsum('btd,dhe->bhte', h, Wv)
            scores = torch.einsum('bhqe,bhke->bhqk', q, k) * scale
            scores = torch.where(mask[None, None], scores, -1000000000.0)
            p = _softmax(scores, axis=-1)
            o = torch.einsum('bhqk,bhke->bhqe', p, v)
            o = torch.einsum('bhte,hed->btd', o, Wo)
            mem = o[:, :M, :].clone()
            outs.append(o[:, M:, :])
        return torch.concatenate(outs, axis=1)
    x = A_x
    g = _sigmoid((x * gate_w).sum(-1, keepdims=True))
    a = _A_ref(x, A_wqkv, A_wo)
    b = _B_ref(x, B_mem0, B_Wq, B_Wk, B_Wv, B_Wo, B_seg_len)
    return g * a + (1 - g) * b
```

```python
import re

REG_RE = re.compile(r'^(-)?(?:abs\()?([vas])(?:(\d+)|\[(\d+):(\d+)\])\)?$')

def parse_reg(tok):
    tok = tok.strip()
    if tok in ('vcc',):
        return [('s', 106), ('s', 107)]
    if tok == 'exec':
        return [('s', 126), ('s', 127)]
    if tok == 'm0':
        return [('s', 124)]
    m = REG_RE.match(tok)
    if not m:
        return []
    k = m.group(2)
    if m.group(3) is not None:
        return [(k, int(m.group(3)))]
    return [(k, i) for i in range(int(m.group(4)), int(m.group(5)) + 1)]

TRANS = ('v_exp_f32', 'v_log_f32', 'v_rcp_f32', 'v_rsq_f32', 'v_sqrt_f32', 'v_sin_f32', 'v_cos_f32')

def mfma_passes(op):
    if '32x32' in op:
        return 8
    return 4

class Ins:
    __slots__ = ('text', 'op', 'dst', 'src', 'kind', 'srcc', 'ab', 'ws')
    def __init__(self, text):
        self.text = text
        t = text.split(';')[0].strip()
        parts = t.split(None, 1)
        self.op = parts[0]
        ops = []
        if len(parts) > 1:
            raw = [x.strip() for x in parts[1].split(',')]
            for i, r in enumerate(raw):
                ops.append(r.split()[0] if r else r)
        op = self.op
        self.dst, self.src, self.srcc, self.ab = [], [], [], []
        self.ws = 1
        if op == 's_nop':
            self.kind = 'nop'
            self.ws = int(ops[0], 0) + 1
        elif op.startswith('v_mfma') or op.startswith('v_smfmac'):
            self.kind = 'mfma'
            self.dst = parse_reg(ops[0])
            self.ab = parse_reg(ops[1]) + parse_reg(ops[2])
            if op.startswith('v_smfmac'):
                self.srcc = list(self.dst)
                self.ab += parse_reg(ops[3])
            else:
                self.srcc = parse_reg(ops[3])
            self.src = self.ab + self.srcc
        elif op.startswith('v_permlane') and 'swap' in op:
            self.kind = 'perm'
            self.dst = parse_reg(ops[0]) + parse_reg(ops[1])
            self.src = list(self.dst)
        elif op.startswith('v_cmp'):
            self.kind = 'valu'
            self.dst = parse_reg(ops[0])
            for o in ops[1:]:
                self.src += parse_reg(o)
        elif op.startswith('v_readfirstlane') or op.startswith('v_readlane'):
            self.kind = 'rdlane'
            self.dst = parse_reg(ops[0])
            for o in ops[1:]:
                self.src += parse_reg(o)
        elif op.startswith('v_'):
            self.kind = 'dpp' if ('_dpp' in op or 'row_' in t or 'quad_perm' in t) else 'valu'
            self.dst = parse_reg(ops[0])
            rest = ops[1:]
            if op.startswith(('v_add_co', 'v_sub_co', 'v_addc_co', 'v_subb_co', 'v_mad_u64')):
                self.dst += parse_reg(ops[1]); rest = ops[2:]
            for o in rest:
                self.src += parse_reg(o)
            if op.startswith(('v_fmac', 'v_pk_fmac', 'v_writelane')) or self.kind == 'dpp':
                self.src += self.dst
            if op.startswith('v_cndmask') and len(ops) == 3:
                self.src += parse_reg('vcc')
        elif op.startswith('ds_'):
            self.kind = 'ds'
            if op.startswith(('ds_read', 'ds_bpermute', 'ds_permute', 'ds_swizzle')):
                self.dst = parse_reg(ops[0])
                for o in ops[1:]:
                    self.src += parse_reg(o)
            else:
                for o in ops:
                    self.src += parse_reg(o)
        elif op.startswith(('global_', 'buffer_', 'flat_')):
            self.kind = 'vmem'
            is_lds = ('_lds_' in op) or re.search(r'\blds\b', t) is not None
            if op.startswith(('buffer_wbl2', 'buffer_inv')):
                pass
            elif is_lds:
                for o in ops: self.src += parse_reg(o)
                self.src += parse_reg('m0')
            elif '_load' in op or ('atomic' in op and re.search(r'\bsc0\b', t) and op.startswith('global_')):
                self.dst = parse_reg(ops[0])
                for o in ops[1:]:
                    self.src += parse_reg(o)
            else:
                for o in ops:
                    self.src += parse_reg(o)
        elif op.startswith('s_'):
            self.kind = 'salu'
            if op.startswith(('s_cmp', 's_bitcmp', 's_cbranch', 's_branch', 's_waitcnt', 's_barrier', 's_endpgm', 's_sleep', 's_setprio')):
                for o in ops: self.src += parse_reg(o)
            else:
                if ops:
                    self.dst = parse_reg(ops[0])
                for o in ops[1:]:
                    self.src += parse_reg(o)
                if 'saveexec' in op:
                    self.dst += parse_reg('exec')
        else:
            self.kind = 'other'

def required_gap(p, c):
    need = 0
    pd = set(p.dst)
    if not pd and p.kind not in ('vmem', 'mfma'):
        return 0
    cs = set(c.src); cd = set(c.dst)
    vec_p = p.kind in ('valu', 'dpp', 'perm', 'rdlane')
    if vec_p:
        pv = {r for r in pd if r[0] in 'va'}
        ps = {r for r in pd if r[0] == 's'}
        if c.kind == 'mfma' and pv & cs: need = max(need, 2)
        if c.kind == 'perm' and pv & cs: need = max(need, 2)
        if c.kind == 'dpp' and pv & cs: need = max(need, 2)
        if c.kind == 'rdlane' and pv & cs: need = max(need, 1)
        if p.op.startswith(TRANS) and c.kind in ('valu', 'dpp', 'perm', 'mfma', 'rdlane', 'vmem', 'ds') and pv & (cs | cd): need = max(need, 1)
        if ps:
            if c.kind == 'vmem' and ps & cs: need = max(need, 5)
            if c.kind in ('valu', 'dpp', 'perm') and ps & cs: need = max(need, 2)
            if c.kind == 'rdlane' and ps & cs: need = max(need, 4)
            if c.kind == 'salu' and ps & cs: need = max(need, 1)
    if p.kind == 'mfma':
        n = mfma_passes(p.op)
        big = {4: 8, 8: 12}[n]
        if c.kind == 'mfma':
            if pd & set(c.ab): need = max(need, big)
            if pd & set(c.srcc):
                same = (list(p.dst) == list(c.srcc)) and c.op == p.op
                if not same: need = max(need, {4: 6, 8: 10}[n])
            elif pd & cd: need = max(need, big)
        elif c.kind in ('valu', 'dpp', 'perm', 'rdlane', 'vmem', 'ds'):
            if pd & (cs | cd): need = max(need, big)
        if c.kind in ('valu', 'dpp', 'perm') and set(p.srcc) & cd:
            need = max(need, {4: 3, 8: 7}[n])
    if p.kind == 'vmem' and ('store' in p.op or 'atomic' in p.op) and ('x3' in p.op or 'x4' in p.op):
        if c.kind in ('valu', 'dpp', 'perm', 'mfma') and set(p.src) & cd: need = max(need, 2)
        elif set(p.src) & cd: need = max(need, 1)
    if p.kind == 'salu':
        if ('s', 124) in pd and c.kind == 'vmem' and ('s', 124) in cs: need = max(need, 1)
    return need

class Asm:
    def __init__(self):
        self.lines = []
        self.hist = []
        self.pos = 0
        self.nops = 0
        self.uid = 0
        self.last_mfma = None
        self.ds_out = []
        self.auto_lgkm = False
    def raw(self, text):
        self.lines.append(text)
    def label(self, name):
        self.lines.append(name + ':')
    def newlabel(self, base='L'):
        self.uid += 1
        return f"{base}_{self.uid}"
    def __call__(self, text):
        for t in text.split('\n'):
            t = t.strip()
            if not t:
                continue
            if t.endswith(':') and ' ' not in t:
                self.lines.append(t); continue
            if t.startswith(';') or t.startswith('.'):
                self.lines.append(t); continue
            self.emit(t)
    def emit(self, t):
        ins = Ins(t)
        if self.auto_lgkm:
            touched = set(ins.src) | set(ins.dst)
            idx = -1
            for i, d in enumerate(self.ds_out):
                if d & touched: idx = i
            if idx >= 0:
                n = min(15, len(self.ds_out) - 1 - idx)
                self.lines.append(f"    s_waitcnt lgkmcnt({n})")
                self.pos += 1
                self.ds_out = self.ds_out[len(self.ds_out) - n:] if n else []
            m = re.search(r'lgkmcnt\((\d+)\)', t) if ins.op == 's_waitcnt' else None
            if m:
                n = int(m.group(1))
                if n < len(self.ds_out):
                    self.ds_out = self.ds_out[len(self.ds_out) - n:] if n else []
            if ins.kind == 'ds':
                self.ds_out.append(set(ins.dst))
        if ins.kind == 'mfma' and self.last_mfma is not None:
            self.pos = max(self.pos, self.last_mfma[0] + self.last_mfma[1])
        need = 0
        for (p, ppos) in self.hist:
            gap = self.pos - ppos
            r = required_gap(p, ins)
            if r - gap > need:
                need = r - gap
        while need > 0:
            k = min(need, 16)
            self.lines.append(f"    s_nop {k-1}")
            self.pos += k; need -= k; self.nops += 1
        self.lines.append("    " + t)
        if ins.kind == 'mfma':
            self.last_mfma = (self.pos, mfma_passes(ins.op))
        self.pos += ins.ws
        self.hist.append((ins, self.pos))
        self.hist = [(p, pp) for (p, pp) in self.hist if self.pos - pp < 24]
    def text(self):
        return "\n".join(self.lines) + "\n"

def vr(base, n=1):
    return f"v{base}" if n == 1 else f"v[{base}:{base+n-1}]"
def ar(base, n=1):
    return f"a{base}" if n == 1 else f"a[{base}:{base+n-1}]"
def sr(base, n=1):
    return f"s{base}" if n == 1 else f"s[{base}:{base+n-1}]"
```

```python
from asmlib import *
from layout import *
from rec import S_AX, S_AWO, S_WO, S_GW, S_OUT, S_WS, S_WAVE, sadd64
import math, struct
def f32bits(x): return "0x%08x" % struct.unpack('<I', struct.pack('<f', x))[0]
NEG = "0xf149f2ca"

class AttnA:
    def __init__(self, a, st_flavor="", ld_flavor=""):
        self.a = a; self.st = st_flavor; self.ld = ld_flavor
        self.sM = 44
        self.sT = 76
        self.sC = 84
        self.sQ, self.sK, self.sV, self.sO = 86, 88, 90, 92
    def setup(self):
        a = self.a
        a("v_lshlrev_b32 v1, 4, v0")
        a("v_and_b32 v2, 31, v0\nv_lshrrev_b32 v3, 5, v0\nv_lshlrev_b32 v3, 2, v3\nv_sub_u32 v2, v2, v3")
        for r in range(16):
            a(f"v_cmp_gt_i32 s[{self.sM+2*r}:{self.sM+2*r+1}], {8*(r>>2)+(r&3)}, v2")
        a(f"s_mov_b32 s{self.sC}, {f32bits(0.25*math.log2(math.e))}")
        a("v_bfe_u32 v2, v0, 4, 1\nv_lshlrev_b32 v2, 14, v2\nv_lshrrev_b32 v3, 5, v0\nv_lshl_add_u32 v2, v3, 8, v2\nv_and_b32 v3, 15, v0\nv_lshl_add_u32 v2, v3, 4, v2")
        a(f"v_mov_b32 v3, {NEG}")
        for i in range(4): a(f"v_mov_b32 v{4+i}, 0x3f803f80")
    def task(self):
        a = self.a; T = self.sT; hp, tt = 6, 7
        ONES, QF, KF, S, O, L, M, TT = 4, 8, 16, 64, 208, 224, 240, 241
        VF = 0
        for kt in range(9):
            a(f"s_sub_i32 s{T}, s{tt}, {8-kt}\ns_max_i32 s{T}, s{T}, 0\ns_lshl_b32 s{T}, s{T}, 15\ns_lshl_b32 s{T+1}, s{hp}, 11\ns_add_u32 s{T}, s{T}, s{T+1}")
            sadd64(a, self.sV, S_WS, T, OFF_VAF)
            sadd64(a, self.sK, S_WS, T, OFF_KAF)
            for u in range(2):
                a(f"global_load_dwordx4 a[{VF+8*kt+4*u}:{VF+8*kt+4*u+3}], v1, s[{self.sV}:{self.sV+1}] offset:{u*1024}{self.ld}")
            for x in range(2):
                a(f"global_load_dwordx4 a[{72+36*x+4*kt}:{72+36*x+4*kt+3}], v1, s[{self.sK}:{self.sK+1}] offset:{x*1024}{self.ld}")
        sadd64(a, self.sQ, S_WS, T, OFF_QAF)
        for x in range(2):
            a(f"global_load_dwordx4 v[{QF+4*x}:{QF+4*x+3}], v1, s[{self.sQ}:{self.sQ+1}] offset:{x*1024}{self.ld}")
        a(f"s_lshl_b32 s{T}, s{tt}, 15\ns_lshl_b32 s{T+1}, s{hp}, 10\ns_add_u32 s{T}, s{T}, s{T+1}")
        sadd64(a, self.sO, S_WS, T, OFF_OAF)
        a("s_waitcnt vmcnt(0)")
        for x in range(2):
            for kt in range(9):
                lskip, lnext = a.newlabel('Laa'), a.newlabel('Laa')
                if kt < 8:
                    a(f"s_cmp_lt_u32 s{tt}, {8-kt}\ns_cbranch_scc1 {lskip}")
                a(f"v_mfma_f32_32x32x16_bf16 v[{S+16*kt}:{S+16*kt+15}], a[{72+36*x+4*kt}:{72+36*x+4*kt+3}], v[{QF+4*x}:{QF+4*x+3}], 0")
                if kt < 8:
                    a(f"s_branch {lnext}")
                    a.label(lskip)
                    for r in range(16): a(f"v_mov_b32 v{S+16*kt+r}, v3")
                    a.label(lnext)
            a("s_nop 15")
            for r in range(16):
                m = f"s[{self.sM+2*r}:{self.sM+2*r+1}]"
                a(f"v_cndmask_b32 v{S+r}, v3, v{S+r}, {m}")
                a(f"v_cndmask_b32 v{S+128+r}, v{S+128+r}, v3, {m}")
            a(f"v_max3_f32 v{M}, v{S}, v{S+1}, v{S+2}\nv_max3_f32 v{TT}, v{S+3}, v{S+4}, v{S+5}")
            r = 6
            while r < 144 - 3:
                a(f"v_max3_f32 v{M}, v{M}, v{S+r}, v{S+r+1}\nv_max3_f32 v{TT}, v{TT}, v{S+r+2}, v{S+r+3}"); r += 4
            a(f"v_max3_f32 v{M}, v{M}, v{S+142}, v{S+143}\nv_max_f32 v{M}, v{M}, v{TT}")
            a(f"v_mov_b32 v{TT}, v{M}\nv_permlane32_swap_b32 v{M}, v{TT}\nv_max_f32 v{M}, v{M}, v{TT}")
            a(f"v_mul_f32 v{M}, s{self.sC}, v{M}")
            for kt in range(9):
                b = S + 16*kt
                for r in range(16): a(f"v_fma_f32 v{b+r}, v{b+r}, s{self.sC}, -v{M}")
                for r in range(16): a(f"v_exp_f32 v{b+r}, v{b+r}")
                for r in range(8): a(f"v_cvt_pk_bf16_f32 v{b+r}, v{b+2*r}, v{b+2*r+1}")
                for u in range(2):
                    c0 = "0" if (kt == 0 and u == 0) else None
                    a(f"v_mfma_f32_32x32x16_bf16 v[{O}:{O+15}], a[{VF+8*kt+4*u}:{VF+8*kt+4*u+3}], v[{b+4*u}:{b+4*u+3}], " + (c0 or f"v[{O}:{O+15}]"))
                    a(f"v_mfma_f32_32x32x16_bf16 v[{L}:{L+15}], v[{ONES}:{ONES+3}], v[{b+4*u}:{b+4*u+3}], " + (c0 or f"v[{L}:{L+15}]"))
            a(f"v_rcp_f32 v{M}, v{L}")
            for i in range(8): a(f"v_mul_f32 v{O+8*x+i}, v{O+8*x+i}, v{M}")
            for i in range(4): a(f"v_cvt_pk_bf16_f32 v{244+i}, v{O+8*x+2*i}, v{O+8*x+2*i+1}")
            a(f"global_store_dwordx4 v2, v[244:247], s[{self.sO}:{self.sO+1}] offset:{x*512}{self.st}")

class AttnX:
    def __init__(self, a, st_flavor="", ld_flavor=""):
        self.a = a; self.st = st_flavor; self.ld = ld_flavor
        self.sM = 44
        self.sHI = 52
        self.sT = 76; self.sC = 84
        self.sQ, self.sK, self.sV, self.sO, self.sKM, self.sLB = 86, 88, 90, 92, 94, 96
    def setup(self):
        a = self.a
        a("v_lshlrev_b32 v1, 4, v0")
        a("v_and_b32 v2, 15, v0\nv_lshrrev_b32 v3, 4, v0\nv_lshlrev_b32 v3, 2, v3\nv_sub_u32 v2, v2, v3")
        for i in range(4):
            a(f"v_cmp_gt_i32 s[{self.sM+2*i}:{self.sM+2*i+1}], {i}, v2")
        a(f"v_cmp_le_u32 s[{self.sHI}:{self.sHI+1}], 32, v0")
        a(f"s_mov_b32 s{self.sC}, {f32bits((128**-0.5)*math.log2(math.e))}")
        a(f"v_mov_b32 v3, {NEG}")
        for i in range(4): a(f"v_mov_b32 v{4+i}, 0x3f803f80")
        for i in range(4): a(f"v_cndmask_b32 v{8+i}, 0, v3, s[{self.sHI}:{self.sHI+1}]")
        a(f"s_lshl_b32 s{self.sLB}, s{S_WAVE}, 12")
        a("v_and_b32 v12, 1, v0\nv_lshlrev_b32 v12, 8, v12\nv_lshrrev_b32 v13, 2, v0\nv_lshl_add_u32 v12, v13, 4, v12")
        a(f"v_add_u32 v12, s{self.sLB}, v12")
        a(f"v_and_b32 v13, 31, v0\nv_lshlrev_b32 v13, 4, v13\nv_add_u32 v13, 8, v13\nv_add_u32 v13, s{self.sLB}, v13")
        a("v_add_u32 v14, 4096, v1")
    def load_x(self):
        a = self.a; T = self.sT; h, s = 6, 7
        QF, KF, VF = 16, 48, 80
        a(f"s_lshl_b32 s{T}, s{s}, 5\ns_add_u32 s{T}, s{T}, s{h}\ns_lshl_b32 s{T+1}, s{T}, 13")
        sadd64(a, self.sQ, S_WS, T+1, OFF_QXF); sadd64(a, self.sK, S_WS, T+1, OFF_KXF); sadd64(a, self.sV, S_WS, T+1, OFF_VXF)
        a(f"s_lshl_b32 s{T+1}, s{T}, 12")
        sadd64(a, self.sKM, S_WS, T+1, OFF_KVM)
        for (base, sb) in ((QF, self.sQ), (KF, self.sK), (VF, self.sV)):
            for i in range(8):
                a(f"global_load_dwordx4 v[{base+4*i}:{base+4*i+3}], v{1 if i < 4 else 14}, s[{sb}:{sb+1}] offset:{(i%4)*1024}{self.ld}")
        a(f"s_lshl_b32 s{T}, s{s}, 18\ns_lshl_b32 s{T+1}, s{h}, 12\ns_add_u32 s{T}, s{T}, s{T+1}")
        sadd64(a, self.sO, S_WS, T, OFF_OXF)
    def load_m(self):
        a = self.a
        KM, VM = 112, 128
        a(f"s_mov_b32 m0, s{self.sLB}\ns_nop 0")
        for kk in range(4):
            a(f"global_load_lds_dwordx4 v1, s[{self.sKM}:{self.sKM+1}] offset:{kk*1024}{self.ld}")
        a("s_waitcnt vmcnt(0)")
        for kk in range(4):
            for rho in range(2):
                a(f"ds_read_b64_tr_b16 v[{KM+4*kk+2*rho}:{KM+4*kk+2*rho+1}], v12 offset:{kk*1024 + rho*512}")
        for t in range(8):
            a(f"ds_read_b64 v[{VM+2*t}:{VM+2*t+1}], v13 offset:{t*512}")
        a("s_waitcnt lgkmcnt(0)")
    def compute(self):
        a = self.a
        ONES, CM, QF, KF, VF, KM, VM = 4, 8, 16, 48, 80, 112, 128
        S, P, O, L, M, TT, PKO = 144, 168, 184, 248, 252, 253, 168
        a("s_waitcnt vmcnt(0)")
        tiles = [(0, 'x0', S), (0, 'm', S+4), (1, 'x0', S+8), (1, 'x1', S+12), (1, 'm', S+16)]
        for kk in range(4):
            for (b, kt, d) in tiles:
                A_ = {'x0': KF + 4*kk, 'x1': KF + 16 + 4*kk, 'm': KM + 4*kk}[kt]
                B_ = QF + 16*b + 4*kk
                c = (f"v[{CM}:{CM+3}]" if kt == 'm' else "0") if kk == 0 else f"v[{d}:{d+3}]"
                a(f"v_mfma_f32_16x16x32_bf16 v[{d}:{d+3}], v[{A_}:{A_+3}], v[{B_}:{B_+3}], {c}")
        for d in (S, S+12):
            for i in range(4):
                a(f"v_cndmask_b32 v{d+i}, v{d+i}, v3, s[{self.sM+2*i}:{self.sM+2*i+1}]")
        for b in range(2):
            R = list(range(S, S+8)) if b == 0 else list(range(S+8, S+20))
            a(f"v_max3_f32 v{M}, v{R[0]}, v{R[1]}, v{R[2]}")
            k = 3
            while k + 1 < len(R):
                a(f"v_max3_f32 v{M}, v{M}, v{R[k]}, v{R[k+1]}"); k += 2
            a(f"v_max_f32 v{M}, v{M}, v{R[k]}")
            a(f"v_mov_b32 v{TT}, v{M}\nv_permlane32_swap_b32 v{M}, v{TT}\nv_max_f32 v{M}, v{M}, v{TT}")
            a(f"v_mov_b32 v{TT}, v{M}\nv_permlane16_swap_b32 v{M}, v{TT}\nv_max_f32 v{M}, v{M}, v{TT}")
            a(f"v_mul_f32 v{M}, s{self.sC}, v{M}")
            for r in R: a(f"v_fma_f32 v{r}, v{r}, s{self.sC}, -v{M}")
            for r in R: a(f"v_exp_f32 v{r}, v{r}")
            PX, PM = P, P + 4
            if b == 0:
                a(f"v_cvt_pk_bf16_f32 v{PX}, v{S}, v{S+1}\nv_cvt_pk_bf16_f32 v{PX+1}, v{S+2}, v{S+3}\nv_mov_b32 v{PX+2}, 0\nv_mov_b32 v{PX+3}, 0")
                a(f"v_cvt_pk_bf16_f32 v{PM}, v{S+4}, v{S+5}\nv_cvt_pk_bf16_f32 v{PM+1}, v{S+6}, v{S+7}")
            else:
                for i in range(6): a(f"v_cvt_pk_bf16_f32 v{PX+i}, v{S+8+2*i}, v{S+9+2*i}")
            a(f"v_mfma_f32_16x16x32_bf16 v[{L}:{L+3}], v[{ONES}:{ONES+3}], v[{PX}:{PX+3}], 0")
            for t in range(8):
                a(f"v_mfma_f32_16x16x32_bf16 v[{O+4*t}:{O+4*t+3}], v[{VF+4*t}:{VF+4*t+3}], v[{PX}:{PX+3}], 0")
            a(f"v_mfma_f32_16x16x16_bf16 v[{L}:{L+3}], v[{ONES}:{ONES+1}], v[{PM}:{PM+1}], v[{L}:{L+3}]")
            for t in range(8):
                a(f"v_mfma_f32_16x16x16_bf16 v[{O+4*t}:{O+4*t+3}], v[{VM+2*t}:{VM+2*t+1}], v[{PM}:{PM+1}], v[{O+4*t}:{O+4*t+3}]")
            a(f"v_rcp_f32 v{M}, v{L}")
            for u in range(4):
                for i in range(8): a(f"v_mul_f32 v{O+8*u+i}, v{O+8*u+i}, v{M}")
                d = 216 + 4*u + 16*b
                for i in range(4): a(f"v_cvt_pk_bf16_f32 v{d+i}, v{O+8*u+2*i}, v{O+8*u+2*i+1}")
                a(f"global_store_dwordx4 v1, v[{d}:{d+3}], s[{self.sO}:{self.sO+1}] offset:{u*1024}{self.st}")
            if b == 0:
                sadd64(a, self.sO, self.sO, imm=131072)

class Stage2:
    def __init__(self, a, nrep, wait_tile=None, ld_flavor=""):
        self.a = a; self.R = nrep; self.wait_tile = wait_tile; self.ld = ld_flavor
        self.sT = 44
        self.sWB = 52; self.sW = 54; self.sOX = 56; self.sOA = 58; self.sXG = 60; self.sOUTP = 62
        self.sTILE = 64; self.sBUF = 65
    def body(self):
        a = self.a; T = self.sT; w = S_WAVE; cg, rep = 6, 7
        T0, T1, L16, VW, VTB, VTA, VXL, VOUT, VRW, VRR = 1, 2, 3, 4, 5, 6, 7, 8, 9, 10
        WA = 16
        GW = 48
        OF = 64
        ACC = 224
        a(f"v_lshlrev_b32 v{L16}, 4, v0")
        a(f"v_lshrrev_b32 v{T0}, 2, v0\nv_and_b32 v{T1}, 3, v0\nv_lshlrev_b32 v{T1}, 4, v{T1}\nv_lshl_add_u32 v{VW}, v{T0}, 10, v{T1}")
        a(f"s_lshl_b32 s{self.sWB}, s{w}, 15")
        a(f"v_lshrrev_b32 v{T0}, 2, v0\nv_lshlrev_b32 v{VTB}, 6, v{T0}\nv_add_u32 v{VTB}, v{VTB}, v{T1}\nv_add_u32 v{VTB}, s{self.sWB}, v{VTB}")
        a(f"v_lshrrev_b32 v{T0}, 5, v0\nv_lshl_add_u32 v{VTA}, v{T0}, 9, v{VTB}")
        def issue(n):
            slot = n % 8
            if n == 0:
                a(f"s_lshl_b32 s{T}, s{w}, 20\ns_lshl_b32 s{T+1}, s{cg}, 6\ns_add_u32 s{T}, s{T}, s{T+1}")
                sadd64(a, self.sW, S_WO, T)
            if n == 16:
                a(f"s_lshl_b32 s{T}, s{w}, 17\ns_lshl_b32 s{T+1}, s{cg}, 6\ns_add_u32 s{T}, s{T}, s{T+1}")
                sadd64(a, self.sW, S_AWO, T)
            for i in range(4):
                a(f"s_add_u32 m0, s{self.sWB}, {slot*4096 + i*1024}\ns_nop 0")
                a(f"global_load_lds_dwordx4 v{VW}, s[{self.sW}:{self.sW+1}]")
                sadd64(a, self.sW, self.sW, imm=16384)
        def consume(n):
            slot = n % 8
            for k2 in range(2):
                for t in range(2):
                    for rho in range(2):
                        if n < 16:
                            r = ((2*n + k2)*2 + t)*4 + 2*rho
                            off = slot*4096 + (32*k2 + 16*rho)*64 + t*8
                            a(f"ds_read_b64_tr_b16 a[{r}:{r+1}], v{VTB} offset:{off}")
                        else:
                            r = WA + ((2*(n-16) + k2)*2 + t)*4 + 2*rho
                            off = slot*4096 + (32*k2 + 8*rho)*64 + t*8
                            a(f"ds_read_b64_tr_b16 v[{r}:{r+1}], v{VTA} offset:{off}")
            a("s_waitcnt lgkmcnt(0)")
        for n in range(8): issue(n)
        a(f"v_lshrrev_b32 v{T0}, 4, v0\nv_lshlrev_b32 v{T0}, 4, v{T0}\ns_lshl_b32 s{T}, s{w}, 8\nv_add_u32 v{T0}, s{T}, v{T0}")
        a(f"v_and_b32 v{T1}, 15, v0\nv_lshl_add_u32 v{VXL}, v{T1}, 10, v{T0}")
        for n in range(18):
            outstanding = min(18, n + 8) - n
            a(f"s_waitcnt vmcnt({4*(outstanding-1)})")
            consume(n)
            if n + 8 < 18: issue(n + 8)
        for kk in range(4):
            a(f"global_load_dwordx4 v[{GW+4*kk}:{GW+4*kk+3}], v{T0}, s[{S_GW}:{S_GW+1}] offset:{kk*64}")
        a(f"v_lshrrev_b32 v{T0}, 4, v0\nv_lshlrev_b32 v{T0}, 4, v{T0}\nv_lshl_add_u32 v{VOUT}, v{T1}, 10, v{T0}\ns_lshl_b32 s{T}, s{cg}, 6\nv_add_u32 v{VOUT}, s{T}, v{VOUT}")
        a(f"s_mul_i32 s{T}, s{w}, 5120\nv_add_u32 v{VRW}, s{T}, v{L16}")
        a(f"s_mov_b32 s{self.sTILE}, s{rep}\ns_mov_b32 s{self.sBUF}, 0")
        a("s_waitcnt vmcnt(0)\ns_barrier")
        loop, lskip = a.newlabel('Ls2'), a.newlabel('Ls2s')
        a.label(loop)
        if self.wait_tile: self.wait_tile(self)
        a(f"s_lshl_b32 s{T}, s{self.sTILE}, 17\ns_lshl_b32 s{T+1}, s{w}, 15\ns_add_u32 s{T}, s{T}, s{T+1}")
        sadd64(a, self.sOX, S_WS, T, OFF_OXF)
        a(f"s_lshl_b32 s{T}, s{self.sTILE}, 14\ns_lshl_b32 s{T+1}, s{w}, 12\ns_add_u32 s{T+1}, s{T}, s{T+1}")
        sadd64(a, self.sOA, S_WS, T+1, OFF_OAF)
        sadd64(a, self.sXG, S_AX, T)
        sadd64(a, self.sOUTP, S_OUT, T)
        for kk in range(4):
            a(f"global_load_dwordx4 v[{OF+4*kk}:{OF+4*kk+3}], v{VXL}, s[{self.sXG}:{self.sXG+1}] offset:{kk*64}")
        for kk in range(4):
            a(f"global_load_dwordx4 v[{OF+16+4*kk}:{OF+16+4*kk+3}], v{L16}, s[{self.sOA}:{self.sOA+1}] offset:{kk*1024}{self.ld}")
        for ks in range(32):
            if ks and ks % 4 == 0: sadd64(a, self.sOX, self.sOX, imm=4096)
            a(f"global_load_dwordx4 v[{OF+32+4*ks}:{OF+32+4*ks+3}], v{L16}, s[{self.sOX}:{self.sOX+1}] offset:{(ks%4)*1024}{self.ld}")
        AB, AA, AG = ACC, ACC + 8, ACC + 16
        for kk in range(4):
            a(f"s_waitcnt vmcnt({39-kk})")
            a(f"v_mfma_f32_16x16x32_bf16 v[{AG}:{AG+3}], v[{GW+4*kk}:{GW+4*kk+3}], v[{OF+4*kk}:{OF+4*kk+3}], " + ("0" if kk == 0 else f"v[{AG}:{AG+3}]"))
        for kk in range(4):
            a(f"s_waitcnt vmcnt({35-kk})")
            for t in range(2):
                r = WA + (kk*2 + t)*4
                a(f"v_mfma_f32_16x16x32_bf16 v[{AA+4*t}:{AA+4*t+3}], v[{r}:{r+3}], v[{OF+16+4*kk}:{OF+16+4*kk+3}], " + ("0" if kk == 0 else f"v[{AA+4*t}:{AA+4*t+3}]"))
        for ks in range(32):
            a(f"s_waitcnt vmcnt({31-ks})")
            for t in range(2):
                r = (ks*2 + t)*4
                a(f"v_mfma_f32_16x16x32_bf16 v[{AB+4*t}:{AB+4*t+3}], a[{r}:{r+3}], v[{OF+32+4*ks}:{OF+32+4*ks+3}], " + ("0" if ks == 0 else f"v[{AB+4*t}:{AB+4*t+3}]"))
        a(f"v_add_u32 v{T0}, s{self.sBUF}, v{VRW}")
        for q in range(5):
            a(f"ds_write_b128 v{T0}, v[{ACC+4*q}:{ACC+4*q+3}] offset:{q*1024}")
        a("s_waitcnt lgkmcnt(0)\ns_barrier")
        a(f"s_lshr_b32 s{T}, s{self.sTILE}, {int(math.log2(self.R))}\ns_and_b32 s{T}, s{T}, 3\ns_cmp_lg_u32 s{T}, s{w}\ns_cbranch_scc1 {lskip}")
        a(f"v_add_u32 v{T0}, s{self.sBUF}, v{L16}")
        for ww in range(4):
            for q in range(5):
                a(f"ds_read_b128 v[{OF+20*ww+4*q}:{OF+20*ww+4*q+3}], v{T0} offset:{ww*5120 + q*1024}")
        a("s_waitcnt lgkmcnt(0)")
        for i in range(17):
            a(f"v_add_f32 v{OF+i}, v{OF+i}, v{OF+20+i}\nv_add_f32 v{OF+40+i}, v{OF+40+i}, v{OF+60+i}\nv_add_f32 v{OF+i}, v{OF+i}, v{OF+40+i}")
        Gt = OF + 16
        a(f"v_mul_f32 v{Gt}, {f32bits(-math.log2(math.e))}, v{Gt}\nv_exp_f32 v{Gt}, v{Gt}\nv_add_f32 v{Gt}, 1.0, v{Gt}\nv_rcp_f32 v{Gt}, v{Gt}")
        for i in range(8):
            a(f"v_sub_f32 v{OF+8+i}, v{OF+8+i}, v{OF+i}\nv_fma_f32 v{OF+i}, v{Gt}, v{OF+8+i}, v{OF+i}")
        for i in range(4): a(f"v_cvt_pk_bf16_f32 v{OF+20+i}, v{OF+2*i}, v{OF+2*i+1}")
        a(f"global_store_dwordx4 v{VOUT}, v[{OF+20}:{OF+23}], s[{self.sOUTP}:{self.sOUTP+1}]")
        a("s_nop 1")
        a.label(lskip)
        a(f"s_xor_b32 s{self.sBUF}, s{self.sBUF}, 20480")
        a(f"s_add_u32 s{self.sTILE}, s{self.sTILE}, {self.R}\ns_cmp_lt_u32 s{self.sTILE}, 128\ns_cbranch_scc1 {loop}")
        a("s_waitcnt vmcnt(0)")
```

```python
from asmlib import *
from layout import *
from rec import rtstamp, S_AX, S_WQKV, S_WQ, S_WK, S_WV, S_WS, S_WAVE, sadd64

class Gemm1:
    S_CG, S_TQ = 6, 7
    def __init__(self, a, st_flavor="", flags=False, wait_init=None):
        self.a = a
        self.st = st_flavor
        self.flags = flags
        self.wait_init = wait_init
        self.sINC = 66
        self.sW = 44
        self.sRS = 46
        self.sOUT = 48
        self.sOST = 50
        self.sX = 52
        self.sT = 54
        self.sI = 60
        self.sSLOT = 61
        self.sPSLOT = 62
        self.sWB = 63
        self.sTYPE = 64
        self.sTILE = 65

    def body(self):
        a = self.a; T = self.sT; w = S_WAVE; cg, tq = self.S_CG, self.S_TQ
        T0, T1, VW, VTR, VXG, VOL = 1, 2, 3, 4, 5, 6
        VRD = 8
        AF = 16
        ACC = 48
        PK = 80
        lB, lA, lgo = a.newlabel('Lg1B'), a.newlabel('Lg1A'), a.newlabel('Lg1go')
        a(f"s_cmp_ge_u32 s{cg}, 48\ns_cbranch_scc1 {lA}")
        a(f"s_lshr_b32 s{T}, s{cg}, 4\ns_and_b32 s{T+1}, s{cg}, 15")
        a(f"s_mov_b32 s{self.sW}, s{S_WK}\ns_mov_b32 s{self.sW+1}, s{S_WK+1}")
        a(f"s_cmp_eq_u32 s{T}, 1\ns_cselect_b32 s{self.sW}, s{S_WV}, s{self.sW}\ns_cselect_b32 s{self.sW+1}, s{S_WV+1}, s{self.sW+1}")
        a(f"s_cselect_b32 s{self.sTYPE}, 1, 0")
        a(f"s_cmp_eq_u32 s{T}, 2\ns_cselect_b32 s{self.sW}, s{S_WQ}, s{self.sW}\ns_cselect_b32 s{self.sW+1}, s{S_WQ+1}, s{self.sW+1}")
        a(f"s_cselect_b32 s{self.sINC}, {OFF_FQ-OFF_FKV}, 0\ns_add_u32 s{self.sINC}, s{self.sINC}, {OFF_FKV}")
        a(f"s_mov_b32 s{self.sRS}, 8192")
        a(f"s_lshl_b32 s{T+2}, s{T}, 24")
        a(f"s_lshl_b32 s{T+3}, s{T+1}, 1\ns_lshr_b32 s{T+4}, s{w}, 1\ns_add_u32 s{T+3}, s{T+3}, s{T+4}\ns_lshl_b32 s{T+3}, s{T+3}, 6\ns_add_u32 s{T+3}, s{T+3}, s{tq}\ns_lshl_b32 s{T+3}, s{T+3}, 13\ns_add_u32 s{T+2}, s{T+2}, s{T+3}")
        a(f"s_and_b32 s{T+3}, s{w}, 1\ns_add_u32 s{T+4}, s{self.sTYPE}, 11\ns_lshl_b32 s{T+3}, s{T+3}, s{T+4}\ns_add_u32 s{T+2}, s{T+2}, s{T+3}")
        sadd64(a, self.sOUT, S_WS, T+2)
        a(f"s_mov_b32 s{self.sOST}, {4*8192}")
        a(f"v_and_b32 v{T0}, 15, v0\nv_lshlrev_b32 v{VOL}, 4, v{T0}\nv_lshrrev_b32 v{T0}, 5, v0\nv_lshl_add_u32 v{VOL}, v{T0}, 8, v{VOL}")
        a(f"s_lshl_b32 s{T+3}, s{self.sTYPE}, 1\ns_sub_u32 s{T+3}, 12, s{T+3}\nv_bfe_u32 v{T0}, v0, 4, 1\nv_lshlrev_b32 v{T0}, s{T+3}, v{T0}\nv_add_u32 v{VOL}, v{VOL}, v{T0}")
        a(f"s_lshl_b32 s{T+1}, s{T+1}, 9")
        a(f"s_branch {lgo}")
        a.label(lA)
        a(f"s_sub_u32 s{T+1}, s{cg}, 48\ns_lshr_b32 s{T}, s{T+1}, 1")
        a(f"s_mov_b32 s{self.sW}, s{S_WQKV}\ns_mov_b32 s{self.sW+1}, s{S_WQKV+1}\ns_mov_b32 s{self.sRS}, 3072")
        a(f"s_cmp_eq_u32 s{T}, 2\ns_cselect_b32 s{self.sTYPE}, 3, 2")
        a(f"s_mov_b32 s{self.sINC}, {OFF_FA1}")
        a(f"s_lshl_b32 s{T+2}, s{T}, 21\ns_lshl_b32 s{T+3}, s{tq}, 15\ns_add_u32 s{T+2}, s{T+2}, s{T+3}")
        a(f"s_and_b32 s{T+3}, s{T+1}, 1\ns_lshl_b32 s{T+3}, s{T+3}, 14\ns_add_u32 s{T+2}, s{T+2}, s{T+3}\ns_lshl_b32 s{T+3}, s{w}, 12\ns_add_u32 s{T+2}, s{T+2}, s{T+3}")
        sadd64(a, self.sOUT, S_WS, T+2, OFF_QAF)
        a(f"s_mov_b32 s{self.sOST}, {4*32768}")
        a(f"v_lshlrev_b32 v{VOL}, 4, v0")
        a(f"s_lshl_b32 s{T+1}, s{T+1}, 9")
        a.label(lgo)
        a(f"s_lshl_b32 s{T+2}, s{w}, 7\ns_add_u32 s{T+1}, s{T+1}, s{T+2}")
        sadd64(a, self.sW, self.sW, T+1)
        VXG = 100
        for i4 in range(4):
            a(f"v_lshrrev_b32 v{T0}, 4, v0\nv_add_u32 v{T0}, {4*i4}, v{T0}\nv_and_b32 v{T1}, 15, v0\nv_xor_b32 v{T1}, v{T1}, v{T0}")
            a(f"v_lshlrev_b32 v{T1}, 4, v{T1}\nv_lshl_add_u32 v{VXG+i4}, v{T0}, 10, v{T1}")
            a(f"s_lshl_b32 s{T}, s{w}, 8\nv_add_u32 v{VXG+i4}, s{T}, v{VXG+i4}")
        a(f"s_lshl_b32 s{T}, s{tq}, 15")
        sadd64(a, self.sX, S_AX, T)
        def xdma(slot_s):
            a(f"s_lshl_b32 s{T}, s{w}, 13\ns_add_u32 s{T}, s{T}, s{slot_s}")
            for i in range(8):
                a(f"s_add_u32 m0, s{T}, {i*1024}")
                if i == 4:
                    sadd64(a, self.sX, self.sX, imm=16384)
                else:
                    a("s_nop 0")
                a(f"global_load_lds_dwordx4 v{VXG + (i & 3)}, s[{self.sX}:{self.sX+1}]")
            sadd64(a, self.sX, self.sX, imm=4*32768 - 16384)
        a(f"s_mov_b32 s{self.sSLOT}, 131072")
        xdma(self.sSLOT)
        a(f"v_lshrrev_b32 v{T0}, 3, v0\nv_mul_lo_u32 v{VW}, v{T0}, s{self.sRS}\nv_and_b32 v{T0}, 7, v0\nv_lshl_add_u32 v{VW}, v{T0}, 4, v{VW}")
        a(f"s_lshl_b32 s{self.sWB}, s{w}, 15")
        a(f"v_lshrrev_b32 v{T0}, 5, v0\nv_lshlrev_b32 v{VTR}, 10, v{T0}\nv_bfe_u32 v{T0}, v0, 2, 2\nv_lshl_add_u32 v{VTR}, v{T0}, 7, v{VTR}")
        a(f"v_bfe_u32 v{T0}, v0, 4, 1\nv_lshl_add_u32 v{VTR}, v{T0}, 5, v{VTR}\nv_and_b32 v{T0}, 3, v0\nv_lshl_add_u32 v{VTR}, v{T0}, 3, v{VTR}")
        a(f"v_add_u32 v{VTR}, s{self.sWB}, v{VTR}")
        a(f"s_lshl_b32 s{T+4}, s{self.sRS}, 3")
        def issue(n):
            slot = n % 8
            for i in range(4):
                a(f"s_add_u32 m0, s{self.sWB}, {slot*4096 + i*1024}")
                a("s_nop 0")
                a(f"global_load_lds_dwordx4 v{VW}, s[{self.sW}:{self.sW+1}]")
                sadd64(a, self.sW, self.sW, T+4)
        def consume(n):
            slot = n % 8
            for k2 in range(2):
                for t in range(2):
                    for rho in range(2):
                        ks = 2*n + k2
                        r = (t*32 + ks)*4 + 2*rho
                        off = slot*4096 + (16*k2 + 4*rho)*128 + t*64
                        a(f"ds_read_b64_tr_b16 a[{r}:{r+1}], v{VTR} offset:{off}")
            a("s_waitcnt lgkmcnt(0)")
        for n in range(8): issue(n)
        for n in range(16):
            outstanding = min(16, n + 8) - n
            a(f"s_waitcnt vmcnt({4*(outstanding-1)})")
            consume(n)
            if n + 8 < 16: issue(n + 8)
        a(f"v_and_b32 v{T0}, 31, v0\nv_lshrrev_b32 v{T1}, 5, v0\nv_and_b32 v{VW}, 15, v0\nv_xor_b32 v{T1}, v{T1}, v{VW}")
        for k8 in range(8):
            a(f"v_xor_b32 v{VW}, {2*k8}, v{T1}\nv_lshlrev_b32 v{VW}, 4, v{VW}\nv_lshl_add_u32 v{VRD+k8}, v{T0}, 8, v{VW}")
        rtstamp(a, 1, 1, 2)
        if self.wait_init: self.wait_init(a, 1, 2, T)
        a("s_barrier")
        a(f"s_mov_b32 s{self.sPSLOT}, 0")
        xdma(self.sPSLOT)
        a(f"s_mov_b32 s{self.sPSLOT}, 32768")
        a(f"s_mov_b32 s{self.sI}, 0\ns_mov_b32 s{self.sTILE}, s{tq}")
        for k8 in range(8): a(f"v_add_u32 v{VRD+k8}, 131072, v{VRD+k8}")
        lend = a.newlabel('Lg1end')
        labels = [a.newlabel('Lg1t') for _ in range(4)]
        for ty in range(1, 4):
            a(f"s_cmp_eq_u32 s{self.sTYPE}, {ty}\ns_cbranch_scc1 {labels[ty]}")
        for ty in range(4):
            a.label(labels[ty])
            nopf = a.newlabel('Lg1np')
            a("s_waitcnt vmcnt(12)")
            a(f"s_cmp_eq_u32 s{self.sI}, 15\ns_cbranch_scc0 {nopf}")
            a("s_waitcnt vmcnt(4)")
            a.label(nopf)
            a("s_barrier")
            if self.flags:
                l2 = a.newlabel('Lg1s')
                a(f"s_cmp_lt_u32 s{self.sI}, 2\ns_cbranch_scc1 {l2}\ns_cmp_lg_u32 s{w}, 0\ns_cbranch_scc1 {l2}")
                self.signal(-8)
                a.label(l2)
            nopf2 = a.newlabel('Lg1np')
            a(f"s_cmp_ge_u32 s{self.sI}, 14\ns_cbranch_scc1 {nopf2}")
            xdma(self.sPSLOT)
            a.label(nopf2)
            def rd(ks):
                b = AF + 4*(ks % 8)
                a(f"ds_read_b128 v[{b}:{b+3}], v{VRD + (ks & 7)} offset:{(ks >> 3)*8192}")
            for ks in range(6): rd(ks)
            for ks in range(32):
                rem = min(32, ks + 6) - (ks + 1)
                a(f"s_waitcnt lgkmcnt({rem})")
                b = AF + 4*(ks % 8)
                for t in range(2):
                    wf = f"a[{(t*32+ks)*4}:{(t*32+ks)*4+3}]"; xf = f"v[{b}:{b+3}]"
                    A_, B_ = (wf, xf) if ty in (0, 2) else (xf, wf)
                    c = "0" if ks == 0 else f"v[{ACC+16*t}:{ACC+16*t+15}]"
                    a(f"v_mfma_f32_32x32x16_bf16 v[{ACC+16*t}:{ACC+16*t+15}], {A_}, {B_}, {c}")
                if ks + 6 < 32: rd(ks + 6)
            a(f"s_add_u32 s{T}, s{self.sSLOT}, 32768\ns_cmp_ge_u32 s{T}, 98304\ns_cselect_b32 s{T}, 0, s{T}\ns_sub_u32 s{T+1}, s{T}, s{self.sSLOT}\ns_mov_b32 s{self.sSLOT}, s{T}")
            for k8 in range(8): a(f"v_add_u32 v{VRD+k8}, s{T+1}, v{VRD+k8}")
            a(f"s_add_u32 s{self.sPSLOT}, s{self.sPSLOT}, 32768\ns_cmp_ge_u32 s{self.sPSLOT}, 98304\ns_cselect_b32 s{self.sPSLOT}, 0, s{self.sPSLOT}")
            for t in range(2):
                for x in range(2):
                    if ty < 2:
                        regs = [4*x + i for i in range(4)] + [8 + 4*x + i for i in range(4)]
                        imm = t*(1024 if ty == 0 else 2048) + x*512
                    else:
                        regs = [8*x + i for i in range(8)]
                        imm = t*2048 + x*1024
                    d = PK + 4*(2*t + x)
                    for i in range(4):
                        a(f"v_cvt_pk_bf16_f32 v{d+i}, v{ACC+16*t+regs[2*i]}, v{ACC+16*t+regs[2*i+1]}")
                    a(f"global_store_dwordx4 v{VOL}, v[{d}:{d+3}], s[{self.sOUT}:{self.sOUT+1}] offset:{imm}{self.st}")
            sadd64(a, self.sOUT, self.sOUT, self.sOST)
            a(f"s_add_u32 s{self.sI}, s{self.sI}, 1\ns_add_u32 s{self.sTILE}, s{self.sTILE}, 4\ns_cmp_lt_u32 s{self.sI}, 16\ns_cbranch_scc1 {labels[ty]}")
            a(f"s_branch {lend}")
        a.label(lend)
        a("s_waitcnt vmcnt(0)")
        if self.flags:
            l2 = a.newlabel('Lg1s')
            a("s_barrier")
            a(f"s_cmp_lg_u32 s{w}, 0\ns_cbranch_scc1 {l2}")
            self.signal(-8); self.signal(-4)
            a.label(l2)

    def signal(self, dtile):
        a = self.a; T = self.sT
        a(f"s_add_i32 s{T+2}, s{self.sTILE}, {dtile}\ns_lshl_b32 s{T+2}, s{T+2}, 7\ns_add_u32 s{T+2}, s{T+2}, s{self.sINC}")
        a(f"v_mov_b32 v1, s{T+2}\nv_mov_b32 v2, 1")
        a("s_mov_b64 exec, 1")
        a(f"global_atomic_add v1, v2, s[{S_WS}:{S_WS+1}]")
        a("s_mov_b64 exec, -1")
```

```python
OFF_KXF = 0x0000000
OFF_VXF = 0x1000000
OFF_QXF = 0x2000000
OFF_OXF = 0x3000000
OFF_KMF = 0x5410000
OFF_VMF = 0x5910000
OFF_QAF = 0x4800000
OFF_KAF = 0x4A00000
OFF_VAF = 0x4C00000
OFF_OAF = 0x4E00000
OFF_PART = 0x5000000
OFF_MEM = 0x5080000
OFF_FLAG = 0x5090000
OFF_TRACE = 0x6000000
OFF_FKV = OFF_FLAG
OFF_FQ = OFF_FLAG + 0x2000
OFF_FA1 = OFF_FLAG + 0x4000
OFF_FX = OFF_FLAG + 0x6000
OFF_FAA = OFF_FLAG + 0x8000
OFF_FM = OFF_FLAG + 0xC000
FLAG_BYTES = 0x4C000
DBG_BAR = 0
DBG_INIT = 128
OFF_KVM = 0x5420000
```

```python
from asmlib import *
from layout import *

S_AX, S_WQKV, S_AWO, S_BX, S_MEM0, S_WQ, S_WK, S_WV, S_WO, S_SEG, S_GW, S_OUT, S_DBG, S_WS = [16 + 2*i for i in range(14)]
S_WAVE = 3
S_RANK = 4
S_LOCAL = 5

L_MEMX = 0
L_KX = 8192
L_QK = 24576
L_O = 28672
L_W = 32768

V_LANE, V_L16, V_MEMRD, V_MX1, V_MX2, V_MX3, V_IDX, V_QKW, V_L8, V_OW, V_PST, V_INB, V_MST, V_WL, V_T0, V_T1 = range(16)
V_FLAG = V_INB
V_MA = 16
V_QKACC = 48
V_VACC = 64
V_WB = 72
V_XF = 96
V_VX = 112
V_WO = 128

def prologue_common(a):
    a("s_load_dwordx16 s[16:31], s[0:1], 0")
    a("s_load_dwordx8 s[32:39], s[0:1], 64")
    a("s_load_dwordx4 s[40:43], s[0:1], 96")
    a("v_lshrrev_b32 v1, 6, v0")
    a(f"v_readfirstlane_b32 s{S_WAVE}, v1")
    a("v_and_b32 v0, 63, v0")
    a("s_waitcnt lgkmcnt(0)")

def sadd64(a, dst, src, off_s=None, imm=0):
    if off_s is not None:
        a(f"s_add_u32 s{dst}, s{src}, s{off_s}")
        a(f"s_addc_u32 s{dst+1}, s{src+1}, 0")
        if imm:
            a(f"s_add_u32 s{dst}, s{dst}, {imm}")
            a(f"s_addc_u32 s{dst+1}, s{dst+1}, 0")
    else:
        a(f"s_add_u32 s{dst}, s{src}, {imm}")
        a(f"s_addc_u32 s{dst+1}, s{src+1}, 0")

RT_ON = [False]
def rtstamp(a, idx, va=14, vb=15):
    if not RT_ON[0]: return
    l = a.newlabel('Lrt')
    a(f"s_cmp_lg_u32 s{S_WAVE}, 0\ns_cbranch_scc1 {l}")
    a("s_memrealtime s[100:101]\ns_waitcnt lgkmcnt(0)")
    a(f"s_lshl_b32 s101, s2, 6\ns_add_u32 s101, s101, {OFF_TRACE + 0x8000 + idx*4}\nv_mov_b32 v{va}, s101\nv_mov_b32 v{vb}, s100")
    a("s_mov_b64 exec, 1")
    a(f"global_store_dword v{va}, v{vb}, s[{S_WS}:{S_WS+1}]")
    a("s_mov_b64 exec, -1")
    a.label(l)

class Rec:
    def __init__(self, a, stamps=False, flags=False, wait_init=None, trace=False, nsteps=64):
        self.a = a
        self.stamps = stamps
        self.flags = flags
        self.wait_init = wait_init
        self.sFL = 67
        self.sRDY = 20
        self.trace = trace
        self.nsteps = nsteps
        self.flavor = ' sc1'
        self.sMEM = [44, 46]; self.sPART = [48, 50]; self.sPART2 = [52, 54]
        self.sKX, self.sVX, self.sKM, self.sVM = 56, 58, 60, 62
        self.sINB = [16, 18]
        self.sT = 64
        self.sSTEP = 68
        self.sC = 69
        self.sSELM = 70
        self.sHI = 78
        self.sN4 = 80
        self.sSPIN = 82
        self.sKXL = 83
        self.sST = 84
        self.lds_blocks = [('v', s) for s in range(8)]
        self.loc = {}
        regblocks = [(m, s) for m in 'qk' for s in range(8)] + [('o', i) for i in range(8)] + [('v', s) for s in range(8)]
        regblocks = [b for b in regblocks if b not in self.lds_blocks]
        assert len(regblocks) == 24
        for i, b in enumerate(regblocks):
            self.loc[b] = ('a', 16*i) if i < 16 else ('v', V_WO + 16*(i-16))
        for i, b in enumerate(self.lds_blocks):
            self.loc[b] = ('l', i)
        self.regblocks = regblocks

    def store(self, text):
        for t in text: self.a(t + self.flavor)

    def frag(self, mat, idx, t):
        k, base = self.loc[(mat, idx)]
        assert k != 'l'
        return f"{k}[{base+8*t}:{base+8*t+7}]"

    def setup(self):
        a = self.a
        h, w = S_RANK, S_WAVE
        T = self.sT
        a(f"v_lshlrev_b32 v{V_L16}, 4, v0")
        a(f"v_lshlrev_b32 v{V_L8}, 3, v0")
        a(f"s_lshl_b32 s{T}, s{w}, 11")
        a(f"v_add_u32 v{V_MEMRD}, s{T}, v{V_L16}")
        for i, r in enumerate((V_MX1, V_MX2, V_MX3)):
            a(f"s_add_u32 s{T}, s{w}, {i+1}\ns_and_b32 s{T}, s{T}, 3\ns_lshl_b32 s{T}, s{T}, 11")
            a(f"v_add_u32 v{r}, s{T}, v{V_L16}")
        a(f"v_and_b32 v{V_T0}, 8, v0\nv_cmp_ne_u32 vcc, 0, v{V_T0}")
        a(f"v_mov_b32 v{V_IDX}, 0x4444\nv_mov_b32 v{V_T1}, 0xeeee\nv_cndmask_b32 v{V_IDX}, v{V_IDX}, v{V_T1}, vcc")
        a(f"v_and_b32 v{V_T0}, 15, v0\nv_lshrrev_b32 v{V_T1}, 5, v0\nv_lshl_add_u32 v{V_T0}, v{V_T1}, 4, v{V_T0}")
        a(f"v_lshlrev_b32 v{V_T0}, 5, v{V_T0}\nv_bfe_u32 v{V_T1}, v0, 4, 1\nv_lshl_add_u32 v{V_T0}, v{V_T1}, 3, v{V_T0}")
        a(f"s_lshl_b32 s{T}, s{w}, 10\ns_add_u32 s{T}, s{T}, {L_QK}\nv_add_u32 v{V_QKW}, s{T}, v{V_T0}")
        a(f"s_lshr_b32 s{T}, s{w}, 1\ns_lshl_b32 s{T}, s{T}, 10\ns_and_b32 s{T+1}, s{w}, 1\ns_lshl_b32 s{T+1}, s{T+1}, 7\ns_add_u32 s{T}, s{T}, s{T+1}\ns_add_u32 s{T}, s{T}, {L_O - 128}")
        a(f"v_add_u32 v{V_OW}, s{T}, v{V_L16}")
        a(f"v_bfe_u32 v{V_T0}, v0, 2, 2\nv_lshlrev_b32 v{V_T0}, 13, v{V_T0}\nv_lshrrev_b32 v{V_T1}, 4, v0\nv_lshl_add_u32 v{V_T0}, v{V_T1}, 11, v{V_T0}")
        a(f"v_and_b32 v{V_T1}, 3, v0\nv_lshl_add_u32 v{V_T0}, v{V_T1}, 4, v{V_T0}")
        a(f"s_lshl_b32 s{T}, s{w}, 16\ns_lshl_b32 s{T+1}, s{h}, 6\ns_add_u32 s{T}, s{T}, s{T+1}\nv_add_u32 v{V_PST}, s{T}, v{V_T0}")
        a(f"s_lshl_b32 s{T+2}, s{h}, 2\ns_add_u32 s{T+2}, s{T+2}, s{w}")
        a(f"s_lshl_b32 s{T}, s{T+2}, 11")
        for p in range(2):
            sadd64(a, self.sINB[p], S_WS, T, OFF_PART + p*262144)
        a(f"v_bfe_u32 v{V_T0}, v0, 4, 1\nv_lshlrev_b32 v{V_T0}, 5, v{V_T0}\nv_and_b32 v{V_T1}, 7, v0\nv_lshl_add_u32 v{V_T0}, v{V_T1}, 2, v{V_T0}")
        a(f"s_lshl_b32 s{T}, s{T+2}, 6\nv_add_u32 v{V_MST}, s{T}, v{V_T0}")
        a(f"s_lshl_b32 s{T}, s{w}, 15\ns_add_u32 s{T}, s{T}, {L_W}\nv_add_u32 v{V_WL}, s{T}, v{V_L16}")
        for p in range(2):
            sadd64(a, self.sMEM[p], S_WS, imm=OFF_MEM + p*8192)
            sadd64(a, self.sPART[p], S_WS, imm=OFF_PART + p*262144)
            sadd64(a, self.sPART2[p], S_WS, imm=OFF_PART + p*262144 + 32768)
        a(f"s_lshl_b32 s{T}, s{h}, 13\ns_lshl_b32 s{T+1}, s{w}, 11\ns_add_u32 s{T}, s{T}, s{T+1}")
        sadd64(a, self.sKX, S_WS, T, OFF_KXF)
        sadd64(a, self.sVX, S_WS, T, OFF_VXF)
        a(f"s_lshl_b32 s{T}, s{h}, 11\ns_lshl_b32 s{T+1}, s{w}, 9\ns_add_u32 s{T}, s{T}, s{T+1}")
        sadd64(a, self.sKM, S_WS, T, OFF_KMF)
        sadd64(a, self.sVM, S_WS, T, OFF_VMF)
        a(f"s_lshl_b32 s{self.sKXL}, s{w}, 11\ns_add_u32 s{self.sKXL}, s{self.sKXL}, {L_KX}")
        import math, struct
        c = (128 ** -0.5) * math.log2(math.e)
        a(f"s_mov_b32 s{self.sC}, 0x{struct.unpack('<I', struct.pack('<f', c))[0]:08x}")
        for r in range(4):
            a(f"v_and_b32 v{V_T0}, 14, v0\nv_cmp_eq_u32 s[{self.sSELM+2*r}:{self.sSELM+2*r+1}], {2*r}, v{V_T0}")
        a(f"v_cmp_le_u32 s[{self.sHI}:{self.sHI+1}], 32, v0")
        a(f"v_and_b32 v{V_T0}, 4, v0\nv_cmp_ne_u32 s[{self.sN4}:{self.sN4+1}], 0, v{V_T0}")

    def load_weights(self):
        a = self.a
        h, w, T = S_RANK, S_WAVE, self.sT
        VQ, VO, VTQ, VTO = 16, 17, 18, 19
        TMP = 32
        a(f"v_lshrrev_b32 v{V_T0}, 2, v0\nv_and_b32 v{V_T1}, 3, v0\nv_lshlrev_b32 v{V_T1}, 4, v{V_T1}")
        a(f"v_lshl_add_u32 v{VQ}, v{V_T0}, 13, v{V_T1}\nv_lshl_add_u32 v{VO}, v{V_T0}, 10, v{V_T1}")
        a(f"s_lshl_b32 s{T}, s{h}, 8\ns_lshl_b32 s{T+1}, s{w}, 6\ns_add_u32 s{T}, s{T}, s{T+1}\nv_add_u32 v{VQ}, s{T}, v{VQ}")
        a(f"s_lshl_b32 s{T}, s{h}, 17\ns_lshl_b32 s{T+1}, s{w}, 8\ns_add_u32 s{T}, s{T}, s{T+1}\nv_add_u32 v{VO}, s{T}, v{VO}")
        a(f"v_bfe_u32 v{V_T0}, v0, 2, 2\nv_lshlrev_b32 v{VTQ}, 10, v{V_T0}\nv_lshrrev_b32 v{V_T1}, 4, v0\nv_lshl_add_u32 v{VTQ}, v{V_T1}, 7, v{VTQ}")
        a(f"v_and_b32 v{V_T1}, 3, v0\nv_lshl_add_u32 v{VTQ}, v{V_T1}, 3, v{VTQ}")
        a(f"v_bfe_u32 v{V_T0}, v0, 3, 1\nv_lshlrev_b32 v{VTO}, 11, v{V_T0}\nv_bfe_u32 v{V_T0}, v0, 2, 1\nv_lshl_add_u32 v{VTO}, v{V_T0}, 6, v{VTO}")
        a(f"v_bfe_u32 v{V_T0}, v0, 4, 1\nv_lshl_add_u32 v{VTO}, v{V_T0}, 10, v{VTO}\nv_bfe_u32 v{V_T0}, v0, 5, 1\nv_lshl_add_u32 v{VTO}, v{V_T0}, 8, v{VTO}")
        a(f"v_lshl_add_u32 v{VTO}, v{V_T1}, 3, v{VTO}")
        a(f"s_lshl_b32 s{T+3}, s{w}, 15\ns_add_u32 s{T+3}, s{T+3}, {L_W}")
        a(f"v_add_u32 v{VTQ}, s{T+3}, v{VTQ}\nv_add_u32 v{VTO}, s{T+3}, v{VTO}")
        order = self.regblocks + self.lds_blocks
        def issue(n):
            mat, idx = order[n]; slot = n % 8
            if mat == 'o':
                ko, tp = idx // 4, idx % 4
                sadd64(a, T, S_WO, imm=ko*65536 + tp*64); step = 16384; vo = VO
            else:
                base = {'q': S_WQ, 'k': S_WK, 'v': S_WV}[mat]
                a(f"s_lshl_b32 s{T+2}, s{w}, 1\ns_add_u32 s{T+2}, s{T+2}, {idx}\ns_and_b32 s{T+2}, s{T+2}, 7\ns_lshl_b32 s{T+2}, s{T+2}, 19")
                sadd64(a, T, base, T+2); step = 131072; vo = VQ
            for i in range(4):
                a(f"s_add_u32 m0, s{T+3}, {slot*4096 + i*1024}")
                if i:
                    sadd64(a, T, T, imm=step)
                else:
                    a("s_nop 0")
                a(f"global_load_lds_dwordx4 v{vo}, s[{T}:{T+1}]")
        def consume(n):
            mat, idx = order[n]; slot = n % 8
            k, base = self.loc[(mat, idx)]
            if k == 'l':
                assert base == slot
                k, base = 'v', TMP
            for t in range(2):
                for rho in range(4):
                    if mat == 'o':
                        off = (8*(rho >> 1) + 2*(rho & 1))*64; va = VTO
                    else:
                        off = ((rho & 1) + 8*(rho >> 1))*64; va = VTQ
                    off += slot*4096 + t*32
                    r = base + 8*t + 2*rho
                    a(f"ds_read_b64_tr_b16 {k}[{r}:{r+1}], v{va} offset:{off}")
            a("s_waitcnt lgkmcnt(0)")
            if self.loc[(mat, idx)][0] == 'l':
                for q in range(4):
                    a(f"ds_write_b128 v{V_WL}, v[{TMP+4*q}:{TMP+4*q+3}] offset:{slot*4096 + q*1024}")
                a("s_waitcnt lgkmcnt(0)")
        for n in range(8):
            issue(n)
        for n in range(32):
            outstanding = min(32, n + 8) - n
            a(f"s_waitcnt vmcnt({4*(outstanding-1)})")
            consume(n)
            if n + 8 < 32:
                issue(n + 8)

    def comm_init(self):
        a = self.a
        T = self.sT
        R = V_MA
        for i in range(4): a(f"v_mov_b32 v{R+i}, -1")
        st = []
        for p in range(2):
            for i in range(2):
                st.append(f"global_store_dwordx4 v{V_L16}, v[{R}:{R+3}], s[{self.sINB[p]}:{self.sINB[p]+1}] offset:{i*1024}")
        self.store(st)
        a(f"s_lshl_b32 s{T+2}, s{S_RANK}, 2\ns_add_u32 s{T+2}, s{T+2}, s{S_WAVE}")
        a(f"s_lshr_b32 s{T}, s{T+2}, 4\ns_lshl_b32 s{T}, s{T}, 7")
        a(f"s_bfe_u32 s{T+1}, s{T+2}, 0x10001\ns_lshl_b32 s{T+1}, s{T+1}, 6\ns_add_u32 s{T}, s{T}, s{T+1}")
        a(f"s_bfe_u32 s{T+1}, s{T+2}, 0x20002\ns_lshl_b32 s{T+1}, s{T+1}, 3\ns_add_u32 s{T}, s{T}, s{T+1}")
        a(f"s_and_b32 s{T+1}, s{T+2}, 1\ns_lshl_b32 s{T+1}, s{T+1}, 12\ns_add_u32 s{T}, s{T}, s{T+1}")
        a(f"v_bfe_u32 v{V_T0}, v0, 4, 1\nv_lshlrev_b32 v{V_T0}, 11, v{V_T0}\nv_bfe_u32 v{V_T1}, v0, 2, 1\nv_lshl_add_u32 v{V_T0}, v{V_T1}, 10, v{V_T0}")
        a(f"v_and_b32 v{V_T1}, 3, v0\nv_lshl_add_u32 v{V_T0}, v{V_T1}, 1, v{V_T0}\nv_add_u32 v{V_T0}, s{T}, v{V_T0}")
        a(f"global_load_ushort v{R+4}, v{V_T0}, s[{S_MEM0}:{S_MEM0+1}]")
        a(f"global_load_ushort v{R+5}, v{V_T0}, s[{S_MEM0}:{S_MEM0+1}] offset:32")
        a("s_waitcnt vmcnt(0)")
        a(f"v_lshl_or_b32 v{R+4}, v{R+5}, 16, v{R+4}\nv_min_u32 v{R+4}, -2, v{R+4}")
        a("s_mov_b64 exec, 0x00ff00ff")
        self.store([f"global_store_dword v{V_MST}, v{R+4}, s[{self.sMEM[0]}:{self.sMEM[0]+1}]",
                    f"global_store_dword v{V_MST}, v{R}, s[{self.sMEM[1]}:{self.sMEM[1]+1}]"])
        a("s_mov_b64 exec, -1")
        a("s_waitcnt vmcnt(0)")

    def announce(self, dbg_off):
        a = self.a
        l2 = a.newlabel('Lan')
        a(f"s_cmp_lg_u32 s{S_WAVE}, 0\ns_cbranch_scc1 {l2}")
        a(f"s_getreg_b32 s{self.sT}, hwreg(HW_REG_XCC_ID)\ns_and_b32 s{self.sT}, s{self.sT}, 15\ns_lshl_b32 s{self.sT}, 1, s{self.sT}")
        a(f"v_mov_b32 v{V_T0}, {dbg_off+4}\nv_mov_b32 v{V_T1}, s{self.sT}")
        a("s_mov_b64 exec, 1")
        a(f"global_atomic_or v{V_T0}, v{V_T1}, s[{S_DBG}:{S_DBG+1}]")
        a("s_mov_b64 exec, -1")
        a.label(l2)

    def group_barrier(self, dbg_off):
        a = self.a
        l0, l1, l2 = a.newlabel('Lgb'), a.newlabel('Lgb'), a.newlabel('Lgb')
        a("s_waitcnt vmcnt(0)\ns_barrier")
        a(f"v_mov_b32 v{V_T0}, {dbg_off}\nv_mov_b32 v{V_T1}, 1")
        a(f"s_cmp_lg_u32 s{S_WAVE}, 0\ns_cbranch_scc1 {l2}")
        a("s_mov_b64 exec, 1")
        a(f"global_atomic_add v{V_T0}, v{V_T1}, s[{S_DBG}:{S_DBG+1}]")
        a("s_mov_b64 exec, -1")
        a.label(l2)
        a(f"s_mov_b32 s{self.sSPIN}, 0")
        a.label(l0)
        a(f"global_load_dwordx2 v[{V_MA}:{V_MA+1}], v{V_T0}, s[{S_DBG}:{S_DBG+1}] sc1")
        a(f"s_add_u32 s{self.sSPIN}, s{self.sSPIN}, 1\ns_cmp_gt_u32 s{self.sSPIN}, 0x100000\ns_cbranch_scc1 {l1}")
        a(f"s_waitcnt vmcnt(0)\nv_readfirstlane_b32 s{self.sT}, v{V_MA}")
        a(f"s_cmp_lt_u32 s{self.sT}, 32\ns_cbranch_scc1 {l0}")
        a.label(l1)
        a(f"s_waitcnt vmcnt(0)\nv_readfirstlane_b32 s{self.sT}, v{V_MA+1}")
        a(f"s_bcnt1_i32_b32 s{S_LOCAL}, s{self.sT}")

    def flag_load(self):
        a = self.a
        a(f"v_lshlrev_b32 v{V_T0}, 7, v0\nv_add_u32 v{V_T0}, {OFF_FKV}, v{V_T0}")
        a(f"global_load_dword v{V_FLAG}, v{V_T0}, s[{S_WS}:{S_WS+1}] sc1")

    def prefetch_kv(self, p, first=False):
        a = self.a
        ld = " sc1" if self.flags else ""
        if self.flags:
            ok, slow, upd = a.newlabel('Lkvok'), a.newlabel('Lkvslow'), a.newlabel('Lkvupd')
            R = self.sRDY
            if not first:
                a(f"s_cmp_eq_u64 s[{R}:{R+1}], -1\ns_cbranch_scc1 {ok}")
                a(f"v_cmp_le_u32 s[{R}:{R+1}], 32, v{V_FLAG}")
                a(f"s_bitcmp1_b64 s[{R}:{R+1}], s{self.sFL}\ns_cbranch_scc1 {upd}")
            a(f"s_mov_b32 s{self.sSPIN}, 0")
            a.label(slow)
            self.flag_load()
            a(f"s_add_u32 s{self.sSPIN}, s{self.sSPIN}, 1\ns_cmp_gt_u32 s{self.sSPIN}, 0x100000\ns_cbranch_scc1 {upd}")
            a(f"s_waitcnt vmcnt(0)\nv_cmp_le_u32 s[{R}:{R+1}], 32, v{V_FLAG}")
            a(f"s_bitcmp1_b64 s[{R}:{R+1}], s{self.sFL}\ns_cbranch_scc0 {slow}")
            a.label(upd)
            self.flag_load()
            a.label(ok)
            a(f"s_add_u32 s{self.sFL}, s{self.sFL}, 1")
        a(f"s_add_u32 m0, s{self.sKXL}, {p*8192}")
        a(f"global_load_dwordx4 v[{V_VX+8*p}:{V_VX+8*p+3}], v{V_L16}, s[{self.sVX}:{self.sVX+1}]{ld}")
        a(f"global_load_lds_dwordx4 v{V_L16}, s[{self.sKX}:{self.sKX+1}]{ld}")
        a(f"global_load_lds_dwordx4 v{V_L16}, s[{self.sKX}:{self.sKX+1}] offset:1024{ld}")
        a(f"global_load_dwordx4 v[{V_VX+8*p+4}:{V_VX+8*p+7}], v{V_L16}, s[{self.sVX}:{self.sVX+1}] offset:1024{ld}")
        sadd64(a, self.sKX, self.sKX, imm=262144)
        sadd64(a, self.sVX, self.sVX, imm=262144)

    def publish(self, dstep):
        if not self.flags: return
        a = self.a
        l = a.newlabel('Lpub')
        a(f"s_cmp_lg_u32 s{S_WAVE}, 0\ns_cbranch_scc1 {l}")
        a(f"s_add_i32 s{self.sT}, s{self.sSTEP}, {dstep}\ns_lshl_b32 s{self.sT}, s{self.sT}, 5\ns_add_u32 s{self.sT}, s{self.sT}, s{S_RANK}\ns_lshl_b32 s{self.sT}, s{self.sT}, 2\ns_add_u32 s{self.sT}, s{self.sT}, {OFF_FM}")
        a(f"v_mov_b32 v{V_T0}, s{self.sT}\nv_mov_b32 v{V_T1}, 1")
        a("s_mov_b64 exec, 1")
        a(f"global_store_dword v{V_T0}, v{V_T1}, s[{S_WS}:{S_WS+1}] sc1")
        a("s_mov_b64 exec, -1")
        a.label(l)

    def stamp(self, i):
        if self.stamps:
            self.a(f"s_memtime s[{self.sST+2*i}:{self.sST+2*i+1}]")

    def poll(self, regs, nld, voff, sbase, fail):
        a = self.a
        l = a.newlabel('Lpoll')
        a(f"s_mov_b32 s{self.sSPIN}, 0")
        a.label(l)
        for i in range(nld):
            a(f"global_load_dwordx4 v[{regs+4*i}:{regs+4*i+3}], v{voff}, s[{sbase}:{sbase+1}] offset:{i*1024} sc1")
        a(f"s_add_u32 s{self.sSPIN}, s{self.sSPIN}, 1\ns_cmp_gt_u32 s{self.sSPIN}, 0x100000\ns_cbranch_scc1 {fail}")
        a("s_waitcnt vmcnt(0)")
        r = list(range(regs, regs + 4*nld))
        a(f"v_max3_u32 v{V_T0}, v{r[0]}, v{r[1]}, v{r[2]}")
        a(f"v_max3_u32 v{V_T1}, v{r[3]}, v{r[4]}, v{r[5]}")
        a(f"v_max3_u32 v{V_T0}, v{V_T0}, v{r[6]}, v{r[7]}")
        a(f"v_max_u32 v{V_T0}, v{V_T0}, v{V_T1}")
        a(f"v_cmp_eq_u32 vcc, -1, v{V_T0}")
        a(f"s_cbranch_vccnz {l}")

    def dump(self, reg, n, slot):
        if not self.trace: return
        a = self.a
        l = a.newlabel('Ldump')
        a(f"s_cmp_lg_u32 s{self.sSTEP}, 0\ns_cbranch_scc1 {l}")
        a("s_nop 15")
        a(f"s_lshl_b32 s100, s{S_RANK}, 2\ns_add_u32 s100, s100, s{S_WAVE}\ns_lshl_b32 s100, s100, 16\ns_add_u32 s100, s100, {OFF_TRACE + 0x10000 + slot*1024}")
        a(f"s_add_u32 s100, s100, s{S_WS}\ns_addc_u32 s101, s{S_WS+1}, 0")
        for i in range(n // 4):
            a(f"global_store_dwordx4 v{V_L16}, v[{reg+4*i}:{reg+4*i+3}], s[100:101] offset:{i*1024}")
        a("s_waitcnt vmcnt(0)")
        a.label(l)

    def smf(self, acc, afrag, bfrag):
        self.a(f"v_smfmac_f32_16x16x64_bf16 v[{acc}:{acc+3}], v[{afrag}:{afrag+3}], {bfrag}, v{V_IDX}")

    def step(self, p, fail, done):
        a = self.a
        Q0, Q1, K0, K1 = V_QKACC, V_QKACC+4, V_QKACC+8, V_QKACC+12
        VA0, VA1 = V_VACC, V_VACC+4
        for i in range(24): a(f"v_mov_b32 v{V_QKACC+i}, 0")
        def wv_read(n):
            sg, t = n // 2, n % 2
            buf = V_WB + 8*(n % 3)
            slot = self.loc[('v', sg)][1]
            a(f"ds_read_b128 v[{buf}:{buf+3}], v{V_WL} offset:{slot*4096 + t*2048}")
            a(f"ds_read_b128 v[{buf+4}:{buf+7}], v{V_WL} offset:{slot*4096 + t*2048 + 1024}")
        for n in range(3): wv_read(n)
        self.stamp(0)
        self.poll(V_MA, 2, V_MEMRD, self.sMEM[p], fail)
        self.stamp(1)
        a(f"ds_write_b128 v{V_MEMRD}, v[{V_MA}:{V_MA+3}] offset:{L_MEMX}")
        a(f"ds_write_b128 v{V_MEMRD}, v[{V_MA+4}:{V_MA+7}] offset:{L_MEMX+1024}")
        def qk(sg):
            for (acc, m, t) in ((Q0, 'q', 0), (Q1, 'q', 1), (K0, 'k', 0), (K1, 'k', 1)):
                self.smf(acc, V_MA + 4*sg, self.frag(m, sg, t))
        qk(0)
        a("s_waitcnt lgkmcnt(0)\ns_barrier")
        for i, r in enumerate((V_MX1, V_MX2, V_MX3)):
            for j in range(2):
                d = V_MA + 8*(i+1) + 4*j
                a(f"ds_read_b128 v[{d}:{d+3}], v{r} offset:{L_MEMX + j*1024}")
        qk(1)
        R = V_XF
        for i in range(4): a(f"v_mov_b32 v{R+i}, -1")
        q = 1 - p
        self.store([f"global_store_dwordx4 v{V_L16}, v[{R}:{R+3}], s[{self.sINB[q]}:{self.sINB[q]+1}]",
                    f"global_store_dwordx4 v{V_L16}, v[{R}:{R+3}], s[{self.sINB[q]}:{self.sINB[q]+1}] offset:1024"])
        a("s_mov_b64 exec, 0x00ff00ff")
        self.store([f"global_store_dword v{V_MST}, v{R}, s[{self.sMEM[q]}:{self.sMEM[q]+1}]"])
        a("s_mov_b64 exec, -1")
        if self.flags:
            lp = a.newlabel('Lnopub')
            a(f"s_cmp_eq_u32 s{self.sSTEP}, 0\ns_cbranch_scc1 {lp}")
            self.publish(-1)
            a.label(lp)
        lskip = a.newlabel('Lnopf')
        a(f"s_cmp_ge_u32 s{self.sSTEP}, {self.nsteps-2}\ns_cbranch_scc1 {lskip}")
        self.prefetch_kv(q)
        a.label(lskip)
        for sg in range(2, 8):
            a(f"s_waitcnt lgkmcnt({7-sg})")
            qk(sg)
        if self.trace:
            pass
        self.stamp(2)
        def vsm(n):
            sg, t = n // 2, n % 2
            buf = V_WB + 8*(n % 3)
            self.smf(VA0 if t == 0 else VA1, V_MA + 4*sg, f"v[{buf}:{buf+7}]")
        for n in range(3):
            vsm(n); wv_read(n + 3)
        for (A0, A1) in ((Q0, Q1), (K0, K1)):
            for i in range(4): a(f"v_permlane32_swap_b32 v{A0+i}, v{A1+i}")
            for i in range(4): a(f"v_add_f32 v{A0+i}, v{A0+i}, v{A1+i}")
            a(f"v_cvt_pk_bf16_f32 v{A1}, v{A0}, v{A0+1}\nv_cvt_pk_bf16_f32 v{A1+1}, v{A0+2}, v{A0+3}")
        a(f"ds_write_b64 v{V_QKW}, v[{Q1}:{Q1+1}] offset:16")
        a(f"ds_write_b64 v{V_QKW}, v[{K1}:{K1+1}]")
        a("s_waitcnt lgkmcnt(0)")
        a("s_barrier")
        for kk in range(4):
            for rho in range(2):
                d = V_XF + 4*kk + 2*rho
                a(f"ds_read_b64_tr_b16 v[{d}:{d+1}], v{V_L8} offset:{L_QK + kk*1024 + rho*512}")
        KXA = V_QKACC
        def kx_read(kk, dst):
            for t in range(2):
                a(f"ds_read_b128 v[{dst+4*t}:{dst+4*t+3}], v{V_L16} offset:{L_KX + p*8192 + t*4096 + kk*1024}")
        kx_read(0, KXA); kx_read(1, KXA + 8)
        for n in range(3, 16):
            a("s_waitcnt lgkmcnt(0)") if n in (3,) else None
            if n > 3 and (n % 3) == 0: a("s_waitcnt lgkmcnt(0)")
            vsm(n)
            if n + 3 < 16: wv_read(n + 3)
        KXB = V_MA
        kx_read(2, KXB); kx_read(3, KXB + 8)
        self.stamp(3)
        SX0, SX1, SM = V_WB, V_WB + 4, V_WB + 8
        CM = V_WB + 12
        a(f"v_mov_b32 v{V_T0}, 0xf149f2ca")
        for i in range(4): a(f"v_cndmask_b32 v{CM+i}, 0, v{V_T0}, s[{self.sHI}:{self.sHI+1}]")
        for kk in range(4):
            if kk == 2: a("s_waitcnt lgkmcnt(0)")
            kx = (KXA + 8*kk) if kk < 2 else (KXB + 8*(kk-2))
            X = V_XF + 4*kk
            a(f"v_mfma_f32_16x16x32_bf16 v[{SX0}:{SX0+3}], v[{kx}:{kx+3}], v[{X}:{X+3}], " + ("0" if kk == 0 else f"v[{SX0}:{SX0+3}]"))
            a(f"v_mfma_f32_16x16x32_bf16 v[{SX1}:{SX1+3}], v[{kx+4}:{kx+7}], v[{X}:{X+3}], " + ("0" if kk == 0 else f"v[{SX1}:{SX1+3}]"))
            a(f"v_mfma_f32_16x16x32_bf16 v[{SM}:{SM+3}], v[{X}:{X+3}], v[{X}:{X+3}], " + (f"v[{CM}:{CM+3}]" if kk == 0 else f"v[{SM}:{SM+3}]"))
        KP = V_MA + 16
        a(f"s_lshl_b32 s{self.sT}, s{S_WAVE}, 10\nv_add_u32 v{V_T1}, s{self.sT}, v{V_L8}")
        a(f"ds_read_b64_tr_b16 v[{KP}:{KP+1}], v{V_T1} offset:{L_QK}")
        a(f"ds_read_b64_tr_b16 v[{KP+2}:{KP+3}], v{V_T1} offset:{L_QK+512}")
        for i in range(4): a(f"v_permlane32_swap_b32 v{VA0+i}, v{VA1+i}")
        for i in range(4): a(f"v_add_f32 v{VA0+i}, v{VA0+i}, v{VA1+i}")
        VM0, VM1 = VA1, VA1 + 2
        a(f"v_cvt_pk_bf16_f32 v{VM0}, v{VA0}, v{VA0+1}\nv_cvt_pk_bf16_f32 v{VM0+1}, v{VA0+2}, v{VA0+3}")
        a(f"global_store_dwordx2 v{V_L8}, v[{VM0}:{VM0+1}], s[{self.sVM}:{self.sVM+1}] sc1")
        a(f"v_mov_b32 v{VM1}, v{VM0}\nv_mov_b32 v{VM1+1}, v{VM0+1}")
        a(f"v_lshrrev_b32 v{V_T1}, 4, v0\nv_lshlrev_b32 v{V_T1}, 7, v{V_T1}\nv_and_b32 v{V_T0}, 7, v0\nv_lshl_add_u32 v{V_T1}, v{V_T0}, 4, v{V_T1}")
        a(f"v_permlane32_swap_b32 v{VM0}, v{VM1}\nv_permlane32_swap_b32 v{VM0+1}, v{VM1+1}")
        a("s_waitcnt lgkmcnt(0)")
        a("s_mov_b32 exec_lo, 0x00ff00ff\ns_mov_b32 exec_hi, 0x00ff00ff")
        a(f"global_store_dwordx4 v{V_T1}, v[{KP}:{KP+3}], s[{self.sKM}:{self.sKM+1}] sc1")
        a("s_mov_b64 exec, -1")
        sadd64(a, self.sKM, self.sKM, imm=65536)
        sadd64(a, self.sVM, self.sVM, imm=65536)
        a(f"s_cmp_ge_u32 s{self.sSTEP}, {self.nsteps-1}\ns_cbranch_scc1 {done}")
        self.dump(SX0, 12, 0)
        self.dump(V_XF, 16, 4)
        M, TT = V_T0, V_T1
        S = [SX0+i for i in range(4)] + [SX1+i for i in range(4)] + [SM+i for i in range(4)]
        a(f"v_max3_f32 v{M}, v{S[0]}, v{S[1]}, v{S[2]}\nv_max3_f32 v{TT}, v{S[3]}, v{S[4]}, v{S[5]}")
        a(f"v_max3_f32 v{M}, v{M}, v{S[6]}, v{S[7]}\nv_max3_f32 v{TT}, v{TT}, v{S[8]}, v{S[9]}")
        a(f"v_max3_f32 v{M}, v{M}, v{S[10]}, v{S[11]}\nv_max_f32 v{M}, v{M}, v{TT}")
        a(f"v_mov_b32 v{TT}, v{M}\nv_permlane32_swap_b32 v{M}, v{TT}\nv_max_f32 v{M}, v{M}, v{TT}")
        a(f"v_mov_b32 v{TT}, v{M}\nv_permlane16_swap_b32 v{M}, v{TT}\nv_max_f32 v{M}, v{M}, v{TT}")
        a(f"v_mul_f32 v{M}, s{self.sC}, v{M}")
        for r in S: a(f"v_fma_f32 v{r}, v{r}, s{self.sC}, -v{M}")
        for r in S: a(f"v_exp_f32 v{r}, v{r}")
        PX, PM, ONES = V_WB + 12, V_WB + 16, V_WB + 20
        for i in range(4): a(f"v_mov_b32 v{ONES+i}, 0x3f803f80")
        for i in range(6): a(f"v_cvt_pk_bf16_f32 v{PX+i}, v{S[2*i]}, v{S[2*i+1]}")
        self.dump(SX0, 12, 8)
        OT0, OT1, LL = V_QKACC, V_QKACC + 4, V_QKACC + 8
        VX = V_VX + 8*p
        self.stamp(4)
        a(f"v_mfma_f32_16x16x32_bf16 v[{LL}:{LL+3}], v[{ONES}:{ONES+3}], v[{PX}:{PX+3}], 0")
        a(f"v_mfma_f32_16x16x32_bf16 v[{OT0}:{OT0+3}], v[{VX}:{VX+3}], v[{PX}:{PX+3}], 0")
        a(f"v_mfma_f32_16x16x32_bf16 v[{OT1}:{OT1+3}], v[{VX+4}:{VX+7}], v[{PX}:{PX+3}], 0")
        for i in range(8): a(f"v_mov_b32 v{V_MA+i}, 0")
        a(f"v_mfma_f32_16x16x16_bf16 v[{LL}:{LL+3}], v[{ONES}:{ONES+1}], v[{PM}:{PM+1}], v[{LL}:{LL+3}]")
        a(f"v_mfma_f32_16x16x16_bf16 v[{OT0}:{OT0+3}], v[{VM0}:{VM0+1}], v[{PM}:{PM+1}], v[{OT0}:{OT0+3}]")
        a(f"v_mfma_f32_16x16x16_bf16 v[{OT1}:{OT1+3}], v[{VM1}:{VM1+1}], v[{PM}:{PM+1}], v[{OT1}:{OT1+3}]")
        OUT = V_MA
        for i in range(8, 32): a(f"v_mov_b32 v{OUT+i}, 0")
        self.dump(OT0, 12, 12)
        a(f"v_rcp_f32 v{M}, v{LL}")
        for i in range(8): a(f"v_mul_f32 v{OT0+i}, v{OT0+i}, v{M}")
        OP = V_QKACC + 12
        for i in range(4): a(f"v_cvt_pk_bf16_f32 v{OP+i}, v{OT0+2*i}, v{OT0+2*i+1}")
        a("s_mov_b32 exec_lo, 0xff00ff00\ns_mov_b32 exec_hi, 0xff00ff00")
        a(f"ds_write_b128 v{V_OW}, v[{OP}:{OP+3}]")
        a("s_mov_b64 exec, -1")
        a("s_waitcnt vmcnt(0) lgkmcnt(0)\ns_barrier")
        OA = V_XF
        a(f"ds_read_b128 v[{OA}:{OA+3}], v{V_L16} offset:{L_O}")
        a(f"ds_read_b128 v[{OA+4}:{OA+7}], v{V_L16} offset:{L_O+1024}")
        a("s_waitcnt lgkmcnt(0)")
        self.stamp(5)
        self.dump(OA, 8, 16)
        PK = V_XF + 8
        def oproj(tq):
            for ko in range(2):
                for j in range(4):
                    tau = 4*tq + j
                    self.smf(OUT + 4*tau, OA + 4*ko, self.frag('o', ko*4 + tau//2, tau % 2))
        def opack(tq):
            T0, T2, T1, T3 = [OUT + 4*(4*tq + j) for j in range(4)]
            for i in range(4): a(f"v_permlane32_swap_b32 v{T0+i}, v{T1+i}")
            for i in range(4): a(f"v_permlane32_swap_b32 v{T2+i}, v{T3+i}")
            for i in range(4): a(f"v_add_f32 v{T0+i}, v{T0+i}, v{T1+i}\nv_add_f32 v{T2+i}, v{T2+i}, v{T3+i}")
            for i in range(4): a(f"v_cvt_pk_bf16_f32 v{PK+4*tq+i}, v{T0+i}, v{T2+i}")
            for i in range(4): a(f"v_min_u32 v{PK+4*tq+i}, -2, v{PK+4*tq+i}")
            sb = (self.sPART if tq == 0 else self.sPART2)[p]
            self.store([f"global_store_dwordx4 v{V_PST}, v[{PK+4*tq}:{PK+4*tq+3}], s[{sb}:{sb+1}]"])
        oproj(0); oproj(1)
        self.dump(OUT, 16, 20); self.dump(OUT+16, 16, 24)
        opack(0); opack(1)
        self.dump(PK, 8, 28)
        self.stamp(6)
        IN, SEL, RR = V_WB, V_WB + 8, V_WB + 12
        a(f"v_and_b32 v{V_T0}, 1, v0\nv_lshlrev_b32 v{V_T0}, 4, v{V_T0}\nv_mov_b32 v{V_T1}, 0x3f80\nv_lshlrev_b32 v{RR}, v{V_T0}, v{V_T1}")
        for r in range(4): a(f"v_cndmask_b32 v{SEL+r}, 0, v{RR}, s[{self.sSELM+2*r}:{self.sSELM+2*r+1}]")
        self.poll(IN, 2, V_L16, self.sINB[p], fail)
        self.stamp(7)
        self.dump(IN, 8, 32)
        a(f"v_mfma_f32_16x16x32_bf16 v[{RR}:{RR+3}], v[{SEL}:{SEL+3}], v[{IN}:{IN+3}], 0")
        a(f"v_mfma_f32_16x16x32_bf16 v[{RR}:{RR+3}], v[{SEL}:{SEL+3}], v[{IN+4}:{IN+7}], v[{RR}:{RR+3}]")
        for ror in (4, 8):
            for i in range(4): a(f"v_add_f32_dpp v{RR+i}, v{RR+i}, v{RR+i} row_ror:{ror} row_mask:0xf bank_mask:0xf")
        self.dump(RR, 4, 36)
        a(f"v_cvt_pk_bf16_f32 v{RR}, v{RR}, v{RR+1}\nv_cvt_pk_bf16_f32 v{RR+1}, v{RR+2}, v{RR+3}")
        a(f"v_cndmask_b32 v{RR}, v{RR}, v{RR+1}, s[{self.sN4}:{self.sN4+1}]\nv_min_u32 v{RR}, -2, v{RR}")
        a("s_mov_b64 exec, 0x00ff00ff")
        self.store([f"global_store_dword v{V_MST}, v{RR}, s[{self.sMEM[q]}:{self.sMEM[q]+1}]"])
        a("s_mov_b64 exec, -1")
        if self.stamps:
            a("s_waitcnt lgkmcnt(0)")
            for i in range(7):
                a(f"s_sub_u32 s{self.sT}, s{self.sST+2*i+2}, s{self.sST+2*i}\ns_add_u32 s{6+i}, s{6+i}, s{self.sT}")
        a(f"s_add_u32 s{self.sSTEP}, s{self.sSTEP}, 1")

    def body(self, dbg_bar_off, force_remote=False):
        a = self.a
        rtstamp(a, 0)
        self.setup()
        self.announce(dbg_bar_off)
        self.comm_init()
        rtstamp(a, 1)
        self.load_weights()
        rtstamp(a, 2)
        if self.flags:
            self.wait_init(a, V_T0, V_T1, self.sT)
            a(f"s_mov_b32 s{self.sFL}, 0")
        self.prefetch_kv(0, first=True)
        rtstamp(a, 3)
        self.group_barrier(dbg_bar_off)
        rtstamp(a, 4)
        a(f"s_mov_b32 s{self.sSTEP}, 0")
        if self.stamps:
            for i in range(8): a(f"s_mov_b32 s{6+i}, 0")
            a("s_memtime s[14:15]\ns_waitcnt lgkmcnt(0)")
        done, fail, remote = a.newlabel('Ldone'), a.newlabel('Lfail'), a.newlabel('Lremote')
        if force_remote:
            a(f"s_branch {remote}")
        a(f"s_cmp_lg_u32 s{S_LOCAL}, 1\ns_cbranch_scc1 {remote}")
        for flavor in ('', ' sc1'):
            self.flavor = flavor
            if flavor: a.label(remote)
            loop = a.newlabel('Lrec')
            a.label(loop)
            self.step(0, fail, done)
            self.step(1, fail, done)
            a(f"s_branch {loop}")
        a.label(fail)
        a.label(done)
        a("s_waitcnt vmcnt(0)\ns_barrier")
        self.publish(0)
        rtstamp(a, 5)
        if self.stamps:
            T = self.sT
            a(f"s_memtime s[{T}:{T+1}]\ns_waitcnt lgkmcnt(0)\ns_sub_u32 s13, s{T}, s14")
            a(f"s_lshl_b32 s{T}, s{S_RANK}, 2\ns_add_u32 s{T}, s{T}, s{S_WAVE}\ns_lshl_b32 s{T}, s{T}, 6\ns_add_u32 s{T}, s{T}, {OFF_TRACE}\nv_mov_b32 v1, s{T}")
            for i in range(8): a(f"v_mov_b32 v{16+i}, s{6+i}")
            a(f"v_mov_b32 v24, s{self.sSTEP}")
            a("s_mov_b64 exec, 1")
            a(f"global_store_dwordx4 v1, v[16:19], s[{S_WS}:{S_WS+1}]\nglobal_store_dwordx4 v1, v[20:23], s[{S_WS}:{S_WS+1}] offset:16\nglobal_store_dword v1, v24, s[{S_WS}:{S_WS+1}] offset:32")
            a("s_waitcnt vmcnt(0)")
```

```python
from asmlib import *
from layout import *
from rec import (S_MEM0, S_WQ, S_WK, S_WV, S_WO, S_DBG, S_WS, S_WAVE, S_RANK, S_LOCAL, sadd64, rtstamp,
                 L_MEMX, L_KX, L_QK, L_O, L_W)
import math, struct

L16, DUP, MX0, MX1, MX2, MX3, IDX, QKW, QKR, OW, PST, MST, WL, LANE, T0, T1 = range(16)
WL2 = MX1
PKV = 16
SEL, CM = 20, 24
QA, KA, VA = 28, 32, 36
MA, WB, XF, VX, WREG = 40, 72, 96, 112, 128

class Rec4:
    PERSTEP = False
    GAPA = 128
    GAPB = 128
    GAPB0 = 256
    GAPA0 = 64
    STAMPS = ['pre', 'pollA', 'qk_end', 'v_end', 'sm_end', 'oex', 'ost', 'pollB']
    def __init__(self, a, stamps=False, flags=False, wait_init=None):
        self.a = a; self.stamps = stamps; self.flags = flags; self.wait_init = wait_init
        self.flavor = ' sc1'
        self.sMEM = [44, 46]; self.sPART = [48, 50]; self.sPART2 = [52, 54]; self.sINB = [16, 18]
        self.sKX, self.sVX, self.sKVM = 56, 58, 60
        self.sONES = 62
        self.sT = 64
        self.sSTEP, self.sC = 68, 69
        self.sN4 = 70
        self.sW0 = 72
        self.sRDY = 74
        self.sUPTO = 76
        self.sSPIN = 77
        self.sKXL = 78
        self.sFMA = 79
        self.sST = 84
        self.lds_blocks = [('k', 0), ('q', 2), ('k', 3), ('q', 5), ('k', 6), ('v', 5), ('v', 7), ('o', 0)]
        allb = [(m, s) for m in 'qkv' for s in range(8)] + [('o', i) for i in range(8)]
        self.regblocks = [b for b in allb if b not in self.lds_blocks]
        assert len(self.regblocks) == 24
        self.loc = {}
        for i, b in enumerate(self.regblocks):
            self.loc[b] = ('a', 16*i) if i < 16 else ('v', WREG + 16*(i-16))
        for i, b in enumerate(self.lds_blocks):
            self.loc[b] = ('l', (i + 1) % 8)
        self.ool = []

    def delay(self, cyc):
        n = cyc // 4
        while n > 0:
            k = min(n, 16); self.a(f"s_nop {k-1}"); n -= k

    def nstamp(self, name):
        if self.stamps and name in self.STAMPS:
            i = self.STAMPS.index(name)
            self.a(f"s_memtime s[{self.sST+2*i}:{self.sST+2*i+1}]")

    def setup(self):
        a = self.a; h, w, T = S_RANK, S_WAVE, self.sT
        a(f"v_mov_b32 v{LANE}, v0")
        l = LANE
        a(f"v_lshlrev_b32 v{L16}, 4, v{l}")
        a(f"v_lshrrev_b32 v{T0}, 4, v{l}\nv_lshlrev_b32 v{DUP}, 7, v{T0}\nv_and_b32 v{T0}, 7, v{l}\nv_lshl_add_u32 v{DUP}, v{T0}, 4, v{DUP}")
        a(f"s_lshl_b32 s{T}, s{w}, 11\nv_add_u32 v{MX0}, s{T}, v{L16}")
        a(f"v_and_b32 v{T0}, 8, v{l}\nv_cmp_ne_u32 vcc, 0, v{T0}")
        a(f"v_mov_b32 v{IDX}, 0x4444\nv_mov_b32 v{T1}, 0xeeee\nv_cndmask_b32 v{IDX}, v{IDX}, v{T1}, vcc")
        a(f"v_and_b32 v{T0}, 15, v{l}\nv_lshrrev_b32 v{T1}, 5, v{l}\nv_lshl_add_u32 v{T0}, v{T1}, 4, v{T0}")
        a(f"v_lshlrev_b32 v{T0}, 5, v{T0}\nv_bfe_u32 v{T1}, v{l}, 4, 1\nv_lshl_add_u32 v{T0}, v{T1}, 4, v{T0}")
        a(f"s_lshl_b32 s{T}, s{w}, 10\ns_add_u32 s{T}, s{T}, {L_QK}\nv_add_u32 v{QKW}, s{T}, v{T0}")
        a(f"v_lshrrev_b32 v{T0}, 2, v{l}\nv_lshlrev_b32 v{QKR}, 5, v{T0}\nv_and_b32 v{T0}, 1, v{l}\nv_lshl_add_u32 v{QKR}, v{T0}, 4, v{QKR}")
        a(f"v_bfe_u32 v{T0}, v{l}, 1, 1\nv_xor_b32 v{T0}, 1, v{T0}\nv_lshl_add_u32 v{QKR}, v{T0}, 3, v{QKR}")
        a(f"s_lshl_b32 s{T}, s{w}, 9\ns_add_u32 s{T}, s{T}, {L_O}\nv_add_u32 v{OW}, s{T}, v{DUP}")
        a(f"v_lshrrev_b32 v{T0}, 5, v{l}\nv_lshlrev_b32 v{PST}, 14, v{T0}\nv_bfe_u32 v{T0}, v{l}, 2, 2\nv_lshl_add_u32 v{PST}, v{T0}, 12, v{PST}")
        a(f"v_bfe_u32 v{T0}, v{l}, 4, 1\nv_lshl_add_u32 v{PST}, v{T0}, 11, v{PST}\nv_and_b32 v{T0}, 3, v{l}\nv_lshl_add_u32 v{PST}, v{T0}, 4, v{PST}")
        a(f"s_lshl_b32 s{T}, s{w}, 16\ns_lshl_b32 s{T+1}, s{h}, 6\ns_add_u32 s{T}, s{T}, s{T+1}\nv_add_u32 v{PST}, s{T}, v{PST}")
        a(f"s_lshl_b32 s{T+2}, s{h}, 2\ns_add_u32 s{T+2}, s{T+2}, s{w}")
        a(f"s_lshl_b32 s{T}, s{T+2}, 11")
        for p in range(2): sadd64(a, self.sINB[p], S_WS, T, OFF_PART + p*262144)
        a(f"v_bfe_u32 v{T0}, v{l}, 4, 1\nv_lshlrev_b32 v{T0}, 5, v{T0}\nv_and_b32 v{T1}, 7, v{l}\nv_lshl_add_u32 v{T0}, v{T1}, 2, v{T0}")
        a(f"s_lshl_b32 s{T}, s{T+2}, 6\nv_add_u32 v{MST}, s{T}, v{T0}")
        a(f"s_lshl_b32 s{T}, s{w}, 12\ns_add_u32 s{T}, s{T}, {L_W}\nv_add_u32 v{WL}, s{T}, v{L16}\nv_add_u32 v{WL2}, 65536, v{WL}")
        for p in range(2):
            sadd64(a, self.sMEM[p], S_WS, imm=OFF_MEM + p*8192)
            sadd64(a, self.sPART[p], S_WS, imm=OFF_PART + p*262144)
            sadd64(a, self.sPART2[p], S_WS, imm=OFF_PART + p*262144 + 32768)
        a(f"s_lshl_b32 s{T}, s{h}, 13\ns_lshl_b32 s{T+1}, s{w}, 11\ns_add_u32 s{T}, s{T}, s{T+1}")
        sadd64(a, self.sKX, S_WS, T, OFF_KXF); sadd64(a, self.sVX, S_WS, T, OFF_VXF)
        a(f"s_lshl_b32 s{T}, s{h}, 12\ns_lshl_b32 s{T+1}, s{w}, 10\ns_add_u32 s{T}, s{T}, s{T+1}")
        sadd64(a, self.sKVM, S_WS, T, OFF_KVM - 131072)
        a(f"s_lshl_b32 s{self.sKXL}, s{w}, 11\ns_add_u32 s{self.sKXL}, s{self.sKXL}, {L_KX}")
        c = (128 ** -0.5) * math.log2(math.e)
        a(f"s_mov_b32 s{self.sC}, 0x{struct.unpack('<I', struct.pack('<f', c))[0]:08x}")
        a(f"s_mov_b32 s{self.sONES}, 0x3f803f80\ns_mov_b32 s{self.sONES+1}, 0x3f803f80")
        a(f"v_and_b32 v{T0}, 4, v{l}\nv_cmp_ne_u32 s[{self.sN4}:{self.sN4+1}], 0, v{T0}")
        a(f"s_cmp_eq_u32 s{w}, 0\ns_cselect_b32 s{self.sW0}, 1, 0\ns_mov_b32 s{self.sW0+1}, 0")
        a(f"s_lshl_b32 s{self.sFMA}, s{h}, 7\ns_lshl_b32 s{T}, s{w}, 2\ns_add_u32 s{self.sFMA}, s{self.sFMA}, s{T}\ns_add_u32 s{self.sFMA}, s{self.sFMA}, {OFF_FM - 8192}")
        a(f"v_and_b32 v{T0}, 1, v{l}\nv_lshlrev_b32 v{T0}, 4, v{T0}\nv_mov_b32 v{T1}, 0x3f80\nv_lshlrev_b32 v{T1}, v{T0}, v{T1}\nv_and_b32 v{T0}, 14, v{l}")
        for r in range(4):
            a(f"v_cmp_eq_u32 vcc, {2*r}, v{T0}\nv_cndmask_b32 v{SEL+r}, 0, v{T1}, vcc")
        a(f"v_cmp_le_u32 vcc, 32, v{l}\nv_mov_b32 v{T0}, 0xf149f2ca")
        for r in range(4): a(f"v_cndmask_b32 v{CM+r}, 0, v{T0}, vcc")
        for r in range(4): a(f"v_mov_b32 v{PKV+r}, 0")

    def lslot_addr(self, slot, off):
        return (WL, slot*16384 + off) if slot < 4 else (WL2, (slot-4)*16384 + off)

    def load_weights(self):
        a = self.a; h, w, T, l = S_RANK, S_WAVE, self.sT, LANE
        VQ, VTQ, VTQ2, VTO, VTO2 = MA+8, MA+9, MA+10, MA+11, MA+12
        TMP, OTMP = WB, XF
        a(f"v_lshrrev_b32 v{T0}, 4, v{l}\nv_and_b32 v{T1}, 15, v{l}\nv_lshlrev_b32 v{T1}, 4, v{T1}\nv_lshl_add_u32 v{VQ}, v{T0}, 13, v{T1}")
        a(f"s_lshl_b32 s{T}, s{h}, 8\ns_lshl_b32 s{T+1}, s{w}, 17\ns_add_u32 s{T}, s{T}, s{T+1}\nv_add_u32 v{VQ}, s{T}, v{VQ}")
        a(f"v_bfe_u32 v{T0}, v{l}, 3, 1\nv_lshlrev_b32 v{VTQ}, 5, v{T0}\nv_and_b32 v{T0}, 3, v{l}\nv_lshl_add_u32 v{VTQ}, v{T0}, 3, v{VTQ}")
        a(f"s_lshl_b32 s{T}, s{w}, 8\ns_add_u32 s{T}, s{T}, {L_W}\nv_add_u32 v{VTO}, s{T}, v{VTQ}")
        a(f"s_lshl_b32 s{T}, s{w}, 6\ns_add_u32 s{T}, s{T}, {L_W}\nv_add_u32 v{VTQ}, s{T}, v{VTQ}")
        a(f"v_bfe_u32 v{T0}, v{l}, 2, 1\nv_lshl_add_u32 v{VTQ}, v{T0}, 13, v{VTQ}\nv_lshl_add_u32 v{VTO}, v{T0}, 10, v{VTO}")
        a(f"v_bfe_u32 v{T0}, v{l}, 5, 1\nv_lshl_add_u32 v{VTQ}, v{T0}, 10, v{VTQ}\nv_lshl_add_u32 v{VTO}, v{T0}, 12, v{VTO}")
        a(f"v_bfe_u32 v{T0}, v{l}, 4, 1\nv_lshl_add_u32 v{VTQ}, v{T0}, 9, v{VTQ}\nv_lshl_add_u32 v{VTO}, v{T0}, 14, v{VTO}")
        a(f"v_add_u32 v{VTQ2}, 65536, v{VTQ}\nv_add_u32 v{VTO2}, 65536, v{VTO}")
        a(f"s_lshl_b32 s{T+3}, s{w}, 12\ns_add_u32 s{T+3}, s{T+3}, {L_W}")
        a(f"s_lshl_b32 s{T+2}, s{h}, 17\ns_lshl_b32 s{T}, s{w}, 12\ns_add_u32 s{T+2}, s{T+2}, s{T}")
        items = [('O', i) for i in range(8)] + [b for b in self.regblocks if b[0] != 'o'] + [b for b in self.lds_blocks if b[0] != 'o']
        assert len(items) == 32
        def issue(n):
            mat, idx = items[n]; slot = n % 8
            if mat == 'O':
                sadd64(a, T, S_WO, T+2, idx*16384)
                a(f"s_add_u32 m0, s{T+3}, {slot*16384}\ns_nop 0")
                for i in range(4):
                    a(f"global_load_lds_dwordx4 v{L16}, s[{T}:{T+1}] offset:{i*1024}")
            else:
                base = {'q': S_WQ, 'k': S_WK, 'v': S_WV}[mat]
                sadd64(a, T, base, imm=idx << 19)
                for i in range(4):
                    a(f"s_add_u32 m0, s{T+3}, {slot*16384 + i*1024}")
                    if i: sadd64(a, T, T, imm=32768)
                    else: a("s_nop 0")
                    a(f"global_load_lds_dwordx4 v{VQ}, s[{T}:{T+1}]")
        def consume(n):
            mat, idx = items[n]; slot = n % 8
            if mat == 'O':
                if idx % 2 == 0: return False
                ko = idx // 2; s0 = slot - 1
                va, sb = (VTO, s0*16384) if s0 < 4 else (VTO2, (s0-4)*16384)
                for j in range(4):
                    k, base = self.loc[('o', (ko // 2)*4 + j)]
                    if k == 'l': k, base = 'v', OTMP
                    for rho in range(4):
                        r = base + 8*(ko % 2) + 2*rho
                        a(f"ds_read_b64_tr_b16 {k}[{r}:{r+1}], v{va} offset:{sb + (8*(rho >> 1) + 2*(rho & 1))*1024 + j*64}")
                a("s_waitcnt lgkmcnt(0)")
                return True
            k, base = self.loc[(mat, idx)]
            isl = k == 'l'
            if isl:
                assert base == slot, (base, slot)
                k, base = 'v', TMP
            va, sb = (VTQ, slot*16384) if slot < 4 else (VTQ2, (slot-4)*16384)
            for b in range(2):
                for rho in range(4):
                    r = base + 8*b + 2*rho
                    a(f"ds_read_b64_tr_b16 {k}[{r}:{r+1}], v{va} offset:{sb + (16*b + 8*(rho >> 1) + (rho & 1))*256}")
            a("s_waitcnt lgkmcnt(0)")
            if isl:
                a("s_barrier")
                for q in range(4):
                    r_, o_ = self.lslot_addr(slot, q*1024)
                    a(f"ds_write_b128 v{r_}, v[{TMP+4*q}:{TMP+4*q+3}] offset:{o_}")
                a("s_waitcnt lgkmcnt(0)")
            return True
        for n in range(8): issue(n)
        issued = 8; consumed = 0
        for n in range(32):
            a(f"s_waitcnt vmcnt({4*(issued - n - 1) + (4 if n > 28 else 0)})")
            a("s_barrier")
            while issued < 32 and issued - 8 < consumed:
                issue(issued); issued += 1
            if n == 2: self.comm_init2()
            if n == 12: self.group_arrive(self.dbg_off)
            if consume(n): consumed = n + 1
            if n == 10 and self.flags:
                a(f"v_mov_b32 v{T0}, {DBG_INIT}")
                a(f"global_load_dword v{MA+2}, v{T0}, s[{S_DBG}:{S_DBG+1}] sc1")
            if n == 19:
                if self.flags:
                    ok = a.newlabel('Lini')
                    a(f"v_readfirstlane_b32 s{T}, v{MA+2}\ns_cmp_ge_u32 s{T}, 8\ns_cbranch_scc1 {ok}")
                    self.wait_init(a, T0, T1, T)
                    a.label(ok)
                    a(f"v_lshlrev_b32 v{T0}, 3, v{L16}\nv_add_u32 v{T0}, {OFF_FKV}, v{T0}")
                    a(f"global_load_dword v{MA+3}, v{T0}, s[{S_WS}:{S_WS+1}] sc1")
                a(f"v_mov_b32 v{T0}, {self.dbg_off}")
                a(f"global_load_dwordx2 v[{MA}:{MA+1}], v{T0}, s[{S_DBG}:{S_DBG+1}] sc1")
            if n == 28:
                if self.flags:
                    a(f"v_cmp_le_u32 s[{self.sRDY}:{self.sRDY+1}], 32, v{MA+3}")
                    a(f"s_ff0_i32_b64 s{self.sUPTO}, s[{self.sRDY}:{self.sRDY+1}]")
                    self.ready_check(0)
                for g in self.prefetch_groups(0):
                    for x in g: a(x)
                ok = a.newlabel('Lgrp')
                a(f"v_readfirstlane_b32 s{T}, v{MA}\ns_cmp_ge_u32 s{T}, 32\ns_cbranch_scc1 {ok}")
                self.group_wait(self.dbg_off)
                a.label(ok)
                a(f"v_readfirstlane_b32 s{T}, v{MA+1}\ns_bcnt1_i32_b32 s{S_LOCAL}, s{T}")
        for q in range(4):
            r_, o_ = self.lslot_addr(self.loc[('o', 0)][1], q*1024)
            a(f"ds_write_b128 v{r_}, v[{OTMP+4*q}:{OTMP+4*q+3}] offset:{o_}")
        a("s_waitcnt lgkmcnt(0)")

    def comm_init(self):
        a = self.a; T, l, R = self.sT, LANE, MA
        for i in range(4): a(f"v_mov_b32 v{R+i}, -1")
        for p in range(2):
            for i in range(2):
                a(f"global_store_dwordx4 v{L16}, v[{R}:{R+3}], s[{self.sINB[p]}:{self.sINB[p]+1}] offset:{i*1024} sc1")
        a(f"s_lshl_b32 s{T+2}, s{S_RANK}, 2\ns_add_u32 s{T+2}, s{T+2}, s{S_WAVE}")
        a(f"s_lshr_b32 s{T}, s{T+2}, 4\ns_lshl_b32 s{T}, s{T}, 7")
        a(f"s_bfe_u32 s{T+1}, s{T+2}, 0x10003\ns_lshl_b32 s{T+1}, s{T+1}, 5\ns_add_u32 s{T}, s{T}, s{T+1}")
        a(f"s_bfe_u32 s{T+1}, s{T+2}, 0x20001\ns_lshl_b32 s{T+1}, s{T+1}, 3\ns_add_u32 s{T}, s{T}, s{T+1}")
        a(f"s_and_b32 s{T+1}, s{T+2}, 1\ns_lshl_b32 s{T+1}, s{T+1}, 12\ns_add_u32 s{T}, s{T}, s{T+1}")
        a(f"v_bfe_u32 v{T0}, v{l}, 4, 1\nv_lshlrev_b32 v{T0}, 11, v{T0}\nv_bfe_u32 v{T1}, v{l}, 2, 1\nv_lshl_add_u32 v{T0}, v{T1}, 10, v{T0}")
        a(f"v_and_b32 v{T1}, 3, v{l}\nv_lshl_add_u32 v{T0}, v{T1}, 1, v{T0}\nv_add_u32 v{T0}, s{T}, v{T0}")
        a(f"global_load_ushort v{R+4}, v{T0}, s[{S_MEM0}:{S_MEM0+1}]")
        a(f"global_load_ushort v{R+5}, v{T0}, s[{S_MEM0}:{S_MEM0+1}] offset:64")

    def comm_init2(self):
        a = self.a; R = MA
        a(f"v_lshl_or_b32 v{R+4}, v{R+5}, 16, v{R+4}\nv_min_u32 v{R+4}, -2, v{R+4}")
        a("s_mov_b64 exec, 0x00ff00ff")
        a(f"global_store_dword v{MST}, v{R+4}, s[{self.sMEM[0]}:{self.sMEM[0]+1}] sc1")
        a(f"global_store_dword v{MST}, v{R}, s[{self.sMEM[1]}:{self.sMEM[1]+1}] sc1")
        a("s_mov_b64 exec, -1")

    def announce(self, off):
        a = self.a; T = self.sT
        a(f"s_getreg_b32 s{T}, hwreg(HW_REG_XCC_ID)\ns_and_b32 s{T}, s{T}, 15\ns_lshl_b32 s{T}, 1, s{T}")
        a(f"v_mov_b32 v{T0}, {off+4}\nv_mov_b32 v{T1}, s{T}")
        a(f"s_mov_b64 exec, s[{self.sW0}:{self.sW0+1}]")
        a(f"global_atomic_or v{T0}, v{T1}, s[{S_DBG}:{S_DBG+1}]")
        a("s_mov_b64 exec, -1")

    def group_arrive(self, off):
        a = self.a
        a(f"v_mov_b32 v{T0}, {off}\nv_mov_b32 v{T1}, 1")
        a(f"s_mov_b64 exec, s[{self.sW0}:{self.sW0+1}]")
        a(f"global_atomic_add v{T0}, v{T1}, s[{S_DBG}:{S_DBG+1}]")
        a("s_mov_b64 exec, -1")

    def group_wait(self, off):
        a = self.a; T = self.sT
        l0, l1 = a.newlabel('Lgb'), a.newlabel('Lgb')
        a(f"v_mov_b32 v{T0}, {off}")
        a.label(l0)
        a(f"global_load_dwordx2 v[{MA}:{MA+1}], v{T0}, s[{S_DBG}:{S_DBG+1}] sc1")
        a(f"s_add_u32 s{self.sSPIN}, s{self.sSPIN}, 1\ns_cmp_gt_u32 s{self.sSPIN}, 0x100000\ns_cbranch_scc1 {l1}")
        a(f"s_waitcnt vmcnt(0)\nv_readfirstlane_b32 s{T}, v{MA}")
        a(f"s_cmp_lt_u32 s{T}, 32\ns_cbranch_scc1 {l0}")
        a.label(l1)
        a(f"s_waitcnt vmcnt(0)\nv_readfirstlane_b32 s{T}, v{MA+1}")
        a(f"s_bcnt1_i32_b32 s{S_LOCAL}, s{T}")

    def ready_slow(self, entry, back, want_next):
        a = self.a; R = self.sRDY
        a.label(entry)
        again = a.newlabel('Lrdy')
        a.label(again)
        a(f"v_lshlrev_b32 v{T0}, 3, v{L16}\nv_add_u32 v{T0}, {OFF_FKV}, v{T0}")
        a(f"global_load_dword v{T1}, v{T0}, s[{S_WS}:{S_WS+1}] sc1")
        a(f"s_add_u32 s{self.sSPIN}, s{self.sSPIN}, 1\ns_cmp_gt_u32 s{self.sSPIN}, 0x100000\ns_cbranch_scc1 {back}")
        a(f"s_waitcnt vmcnt(0)\nv_cmp_le_u32 s[{R}:{R+1}], 32, v{T1}")
        a(f"s_ff0_i32_b64 s{self.sUPTO}, s[{R}:{R+1}]")
        a(f"s_add_u32 s{self.sT}, s{self.sSTEP}, {want_next}\ns_cmp_lt_u32 s{self.sT}, s{self.sUPTO}\ns_cbranch_scc0 {again}")
        a(f"s_branch {back}")

    def ready_check(self, want_next):
        if not self.flags: return
        a = self.a
        entry, back = a.newlabel('Lrs'), a.newlabel('Lrb')
        a(f"s_add_u32 s{self.sT}, s{self.sSTEP}, {want_next}\ns_cmp_lt_u32 s{self.sT}, s{self.sUPTO}\ns_cbranch_scc0 {entry}")
        a.label(back)
        self.ool.append(lambda: self.ready_slow(entry, back, want_next))

    def prefetch_groups(self, p):
        ld = " sc1" if self.flags else ""
        return [[f"s_add_u32 m0, s{self.sKXL}, {p*8192}", f"global_load_dwordx4 v[{VX+8*p}:{VX+8*p+3}], v{L16}, s[{self.sVX}:{self.sVX+1}]{ld}"],
                [f"global_load_lds_dwordx4 v{L16}, s[{self.sKX}:{self.sKX+1}]{ld}"],
                [f"global_load_lds_dwordx4 v{L16}, s[{self.sKX}:{self.sKX+1}] offset:1024{ld}"],
                [f"global_load_dwordx4 v[{VX+8*p+4}:{VX+8*p+7}], v{L16}, s[{self.sVX}:{self.sVX+1}] offset:1024{ld}"],
                [f"s_add_u32 s{self.sKX}, s{self.sKX}, 262144", f"s_addc_u32 s{self.sKX+1}, s{self.sKX+1}, 0"],
                [f"s_add_u32 s{self.sVX}, s{self.sVX}, 262144", f"s_addc_u32 s{self.sVX+1}, s{self.sVX+1}, 0"]]
    def pub_groups(self):
        g = [[f"global_store_dwordx4 v{L16}, v[{PKV}:{PKV+3}], s[{self.sKVM}:{self.sKVM+1}] sc1"],
             [f"s_add_u32 s{self.sKVM}, s{self.sKVM}, 131072", f"s_addc_u32 s{self.sKVM+1}, s{self.sKVM+1}, 0"]]
        return g
    def flag_groups(self):
        return [[f"v_mov_b32 v{T0}, s{self.sFMA}"], [f"v_mov_b32 v{T1}, 1"],
                ["s_mov_b64 exec, 1", f"global_store_dword v{T0}, v{T1}, s[{S_WS}:{S_WS+1}] sc1",
                 "s_mov_b64 exec, -1"], [f"s_add_u32 s{self.sFMA}, s{self.sFMA}, 4096"]]

    def smf(self, acc, afrag, bfrag):
        self.a(f"v_smfmac_f32_16x16x64_bf16 v[{acc}:{acc+3}], v[{afrag}:{afrag+3}], {bfrag}, v{IDX}")
    def frag(self, mat, sig):
        k, base = self.loc[(mat, sig // 2)]
        return f"{k}[{base+8*(sig%2)}:{base+8*(sig%2)+7}]"

    def step(self, p, fail, done):
        a = self.a
        a.auto_lgkm = True; a.ds_out = []
        q = 1 - p
        ACC = {'q': QA, 'k': KA, 'v': VA}
        seq = []
        for s in range(16): seq += [('q', s), ('k', s)]
        vorder = [8, 10, 9, 12, 11, 13, 14, 0, 2, 15, 1, 3, 4, 6, 5, 7]
        seq += [('v', s) for s in vorder]
        lq = [x for x in seq if self.loc[(x[0], x[1] // 2)][0] == 'l']
        assert len(lq) == 14
        def lread(n):
            if n >= len(lq): return []
            m, s = lq[n]; buf = WB + 8*(n % 3); slot = self.loc[(m, s // 2)][1]
            r_, o_ = self.lslot_addr(slot, (s % 2)*2048)
            return [f"ds_read_b128 v[{buf}:{buf+3}], v{r_} offset:{o_}", f"ds_read_b128 v[{buf+4}:{buf+7}], v{r_} offset:{o_+1024}"]
        abuf = {}
        def aread(s, b):
            abuf[s] = MA + 4*b
            return f"ds_read_b128 v[{MA+4*b}:{MA+4*b+3}], v{DUP} offset:{L_MEMX + s*512}"
        def gemm(i):
            m, s = seq[i]
            if (m, s) in lq:
                n = lq.index((m, s)); buf = WB + 8*(n % 3)
                self.smf(ACC[m], abuf[s], f"v[{buf}:{buf+7}]")
                for x in lread(n + 3): a(x)
            else:
                self.smf(ACC[m], abuf[s], self.frag(m, s))
        def zero(r, n): return [f"v_mov_b64 v[{r+2*i}:{r+2*i+1}], 0" for i in range(n // 2)]
        for n in range(3):
            for x in lread(n): a(x)
        loopA = a.newlabel('LlA')
        PA = XF + 8
        self.nstamp('pre')
        for x in zero(QA, 12): a(x)
        R = XF
        a(f"v_mov_b64 v[{R}:{R+1}], -1\nv_mov_b64 v[{R+2}:{R+3}], -1")
        def loadsA():
            for j in range(2):
                a(f"global_load_dwordx4 v[{PA+4*j}:{PA+4*j+3}], v{MX0}, s[{self.sMEM[p]}:{self.sMEM[p]+1}] offset:{j*1024} sc1")
        self.delay(self.GAPA0)
        loadsA()
        self.delay(self.GAPA)
        a.label(loopA)
        loadsA()
        a("s_mov_b64 exec, -1")
        a(f"s_add_u32 s{self.sSPIN}, s{self.sSPIN}, 1\ns_cmp_lt_u32 s{self.sSPIN}, 0x100000")
        a("s_waitcnt vmcnt(2)")
        a(f"v_max3_u32 v{T0}, v{PA}, v{PA+1}, v{PA+2}\nv_max3_u32 v{T0}, v{T0}, v{PA+3}, v{PA+4}")
        a(f"ds_write_b128 v{MX0}, v[{PA}:{PA+3}] offset:{L_MEMX}")
        a(f"v_max3_u32 v{T1}, v{PA+5}, v{PA+6}, v{PA+7}")
        a(f"ds_write_b128 v{MX0}, v[{PA+4}:{PA+7}] offset:{L_MEMX+1024}")
        a(f"v_max_u32 v{T0}, v{T0}, v{T1}\nv_cmp_eq_u32 vcc, -1, v{T0}")
        a("s_cselect_b64 exec, vcc, 0")
        a(f"s_cbranch_execnz {loopA}")
        a("s_mov_b64 exec, -1")
        self.nstamp('pollA')
        a("s_waitcnt lgkmcnt(0)\ns_barrier")
        self.nstamp('b1')
        for s in range(8): a(aread(s, s))
        self.ready_check(1)
        F = [["s_mov_b64 exec, 0x00ff00ff", f"global_store_dword v{MST}, v{R}, s[{self.sMEM[q]}:{self.sMEM[q]+1}]{self.flavor}", "s_mov_b64 exec, -1"],
             [f"global_store_dwordx4 v{L16}, v[{R}:{R+3}], s[{self.sINB[q]}:{self.sINB[q]+1}]{self.flavor}"],
             [f"global_store_dwordx4 v{L16}, v[{R}:{R+3}], s[{self.sINB[q]}:{self.sINB[q]+1}] offset:1024{self.flavor}"]]
        for x in F.pop(0): a(x)
        F += self.prefetch_groups(q) + self.pub_groups()
        nslow = 5
        if self.flags:
            F += self.flag_groups(); nslow = 6
        for i in range(32):
            gemm(i)
            m, s = seq[i]
            if m == 'k' and s < 8: a(aread(s + 8, s))
            if m == 'q' and F:
                for x in F.pop(0): a(x)
            self.nstamp(f'g{i}')
        assert not F
        self.nstamp('qk_end')
        kxdst = {0: MA + 16, 1: MA + 24, 2: QA, 3: QA}
        def kx_read(kk):
            d = kxdst[kk]
            return [f"ds_read_b128 v[{d+4*t}:{d+4*t+3}], v{L16} offset:{L_KX + p*8192 + t*4096 + kk*1024}" for t in range(2)]
        gemm(32); a(aread(0, 0))
        gemm(33); a(aread(2, 2))
        a(f"v_cvt_pk_bf16_f32 v{T0}, v{QA}, v{QA+1}\nv_cvt_pk_bf16_f32 v{T1}, v{QA+2}, v{QA+3}")
        a(f"v_cvt_pk_bf16_f32 v{PKV}, v{KA}, v{KA+1}\nv_cvt_pk_bf16_f32 v{PKV+1}, v{KA+2}, v{KA+3}")
        a(f"ds_write_b128 v{QKW}, v[{T0}:{T0+3}]")
        gemm(34)
        gemm(35)
        gemm(36)
        self.nstamp('b2pre')
        a("s_waitcnt lgkmcnt(0)\ns_barrier")
        self.nstamp('b2')
        for kk in (2, 0, 1, 3):
            for rho in range(2):
                d = XF + 4*kk + 2*rho
                a(f"ds_read_b64_tr_b16 v[{d}:{d+1}], v{QKR} offset:{L_QK + kk*1024 + rho*512}")
        for x in kx_read(2): a(x)
        gemm(37)
        for x in kx_read(0): a(x)
        gemm(38)
        a(aread(1, 1)); a(aread(3, 3))
        gemm(39); a(aread(4, 0))
        gemm(40); a(aread(6, 2))
        gemm(41)
        for x in kx_read(1): a(x)
        self.nstamp('v_end')
        SX0, SX1, SM = WB + 8, WB + 12, WB + 16
        PX, PM, ONES = WB, WB + 4, WB + 20
        VM0, VM1 = VA, VA + 2
        def smfma(kk, first):
            kx = kxdst[kk]; X = XF + 4*kk
            for (D, A_, c0) in ((SM, X, f"v[{CM}:{CM+3}]"), (SX0, kx, "0"), (SX1, kx + 4, "0")):
                a(f"v_mfma_f32_16x16x32_bf16 v[{D}:{D+3}], v[{A_}:{A_+3}], v[{X}:{X+3}], " + (c0 if first else f"v[{D}:{D+3}]"))
        smfma(2, True)
        for x in kx_read(3): a(x)
        smfma(0, False)
        a(f"v_mov_b64 v[{ONES}:{ONES+1}], s[{self.sONES}:{self.sONES+1}]\nv_mov_b64 v[{ONES+2}:{ONES+3}], s[{self.sONES}:{self.sONES+1}]")
        smfma(1, False)
        smfma(3, False)
        gemm(42); a(aread(5, 1))
        gemm(43); a(aread(7, 3))
        self.nstamp('s_end')
        M, TT = T0, T1
        S = [SX0+i for i in range(4)] + [SX1+i for i in range(4)] + [SM+i for i in range(4)]
        OUT = MA + 16
        zo = zero(OUT, 16)
        a(f"v_max3_f32 v{M}, v{S[8]}, v{S[9]}, v{S[10]}\nv_max3_f32 v{M}, v{M}, v{S[11]}, v{S[0]}")
        a(f"v_max3_f32 v{TT}, v{S[1]}, v{S[2]}, v{S[3]}\nv_max3_f32 v{M}, v{M}, v{S[4]}, v{S[5]}")
        a(f"v_max3_f32 v{TT}, v{TT}, v{S[6]}, v{S[7]}\nv_max_f32 v{M}, v{M}, v{TT}")
        a(f"v_mov_b32 v{TT}, v{M}")
        gemm(44); gemm(45)
        a(f"v_permlane32_swap_b32 v{M}, v{TT}\nv_max_f32 v{M}, v{M}, v{TT}")
        a(f"v_mov_b32 v{TT}, v{M}")
        gemm(46); gemm(47)
        a(f"v_permlane16_swap_b32 v{M}, v{TT}\nv_max_f32 v{M}, v{M}, v{TT}")
        a(f"v_mul_f32 v{M}, s{self.sC}, v{M}")
        OL = MA
        oslot = self.loc[('o', 0)][1]
        for i in range(4):
            r_, o_ = self.lslot_addr(oslot, i*1024)
            a(f"ds_read_b128 v[{OL+4*i}:{OL+4*i+3}], v{r_} offset:{o_}")
        for r in S[:8]: a(f"v_fma_f32 v{r}, v{r}, s{self.sC}, -v{M}")
        for r in S[:8]: a(f"v_exp_f32 v{r}, v{r}")
        a(f"v_cvt_pk_bf16_f32 v{PKV+2}, v{VA}, v{VA+1}\nv_cvt_pk_bf16_f32 v{PKV+3}, v{VA+2}, v{VA+3}")
        if p == 1:
            a(f"s_cmp_ge_u32 s{self.sSTEP}, 63\ns_cbranch_scc1 {done}")
        for r in S[8:]: a(f"v_fma_f32 v{r}, v{r}, s{self.sC}, -v{M}")
        for i in range(4): a(f"v_cvt_pk_bf16_f32 v{PX+i}, v{S[2*i]}, v{S[2*i+1]}")
        OT0, OT1 = QA, KA
        LLX = SX0
        V_ = VX + 8*p
        self.nstamp('sm_end')
        a(f"v_mov_b64 v[{VM0}:{VM0+1}], v[{PKV+2}:{PKV+3}]\nv_mov_b64 v[{VM1}:{VM1+1}], v[{PKV+2}:{PKV+3}]")
        a(f"v_mfma_f32_16x16x32_bf16 v[{LLX}:{LLX+3}], v[{ONES}:{ONES+3}], v[{PX}:{PX+3}], 0")
        a(f"v_exp_f32 v{S[8]}, v{S[8]}")
        a(f"v_mfma_f32_16x16x32_bf16 v[{OT0}:{OT0+3}], v[{V_}:{V_+3}], v[{PX}:{PX+3}], 0")
        a(f"v_exp_f32 v{S[9]}, v{S[9]}")
        a(f"v_mfma_f32_16x16x32_bf16 v[{OT1}:{OT1+3}], v[{V_+4}:{V_+7}], v[{PX}:{PX+3}], 0")
        a(f"v_exp_f32 v{S[10]}, v{S[10]}\nv_exp_f32 v{S[11]}, v{S[11]}")
        a(f"v_permlane32_swap_b32 v{VM0}, v{VM1}")
        a(f"v_cvt_pk_bf16_f32 v{PM}, v{S[8]}, v{S[9]}\nv_cvt_pk_bf16_f32 v{PM+1}, v{S[10]}, v{S[11]}")
        a(f"v_permlane32_swap_b32 v{VM0+1}, v{VM1+1}")
        a(f"v_mfma_f32_16x16x16_bf16 v[{LLX}:{LLX+3}], v[{ONES}:{ONES+1}], v[{PM}:{PM+1}], v[{LLX}:{LLX+3}]")
        a(zo[0]); a(zo[1])
        a(f"v_mfma_f32_16x16x16_bf16 v[{OT0}:{OT0+3}], v[{VM0}:{VM0+1}], v[{PM}:{PM+1}], v[{OT0}:{OT0+3}]")
        a(zo[2]); a(zo[3])
        a(f"v_mfma_f32_16x16x16_bf16 v[{OT1}:{OT1+3}], v[{VM1}:{VM1+1}], v[{PM}:{PM+1}], v[{OT1}:{OT1+3}]")
        a(f"v_rcp_f32 v{M}, v{LLX}")
        a("s_mov_b32 exec_lo, 0xff00ff00\ns_mov_b32 exec_hi, 0xff00ff00")
        OP = SX1
        for i in range(4): a(f"v_mul_f32 v{OT0+i}, v{OT0+i}, v{M}")
        for i in range(2): a(f"v_cvt_pk_bf16_f32 v{OP+i}, v{OT0+2*i}, v{OT0+2*i+1}")
        for i in range(4): a(f"v_mul_f32 v{OT1+i}, v{OT1+i}, v{M}")
        for i in range(2): a(f"v_cvt_pk_bf16_f32 v{OP+2+i}, v{OT1+2*i}, v{OT1+2*i+1}")
        a(f"ds_write_b128 v{OW}, v[{OP}:{OP+3}]")
        a("s_mov_b64 exec, -1")
        for x in zo[4:]: a(x)
        self.nstamp('b3pre')
        a(f"s_waitcnt vmcnt({nslow}) lgkmcnt(0)")
        self.nstamp('b3v')
        a("s_barrier")
        self.nstamp('b3')
        OA = XF
        for ko in range(4):
            a(f"ds_read_b128 v[{OA+4*ko}:{OA+4*ko+3}], v{DUP} offset:{L_O + ko*512}")
        self.nstamp('oex')
        PK = MA
        def ofrag(j, ko):
            k, base = self.loc[('o', (ko // 2)*4 + j)]
            if k == 'l': k, base = 'v', OL
            return f"{k}[{base+8*(ko%2)}:{base+8*(ko%2)+7}]"
        def fin(tq):
            A0, A1 = OUT + 8*tq, OUT + 8*tq + 4
            sb = (self.sPART if tq == 0 else self.sPART2)[p]
            return [f"v_cvt_pk_bf16_f32 v{PK+4*tq+i}, v{A0+i}, v{A1+i}" for i in range(4)] + \
                   [f"v_min_u32 v{PK+4*tq+i}, -2, v{PK+4*tq+i}" for i in range(4)] + \
                   [f"global_store_dwordx4 v{PST}, v[{PK+4*tq}:{PK+4*tq+3}], s[{sb}:{sb+1}]{self.flavor}"]
        for ko in range(4):
            for j in range(2): self.smf(OUT + 4*j, OA + 4*ko, ofrag(j, ko))
        f0 = fin(0); n = 0
        for ko in range(4):
            for j in range(2, 4):
                self.smf(OUT + 4*j, OA + 4*ko, ofrag(j, ko))
                if n >= 1:
                    for x in f0[:2]: a(x)
                    f0 = f0[2:]
                n += 1
        for x in f0 + fin(1): a(x)
        self.nstamp('ost')
        IN, RR = MA + 8, QA
        loopB = a.newlabel('LlB')
        def loadsB():
            for i in range(2):
                a(f"global_load_dwordx4 v[{IN+4*i}:{IN+4*i+3}], v{L16}, s[{self.sINB[p]}:{self.sINB[p]+1}] offset:{i*1024} sc1")
        self.delay(self.GAPB0)
        loadsB()
        self.delay(self.GAPB)
        a.label(loopB)
        loadsB()
        a("s_mov_b64 exec, -1")
        a(f"s_add_u32 s{self.sSPIN}, s{self.sSPIN}, 1\ns_cmp_lt_u32 s{self.sSPIN}, 0x100000")
        a("s_waitcnt vmcnt(2)")
        a(f"v_max3_u32 v{T0}, v{IN}, v{IN+1}, v{IN+2}\nv_max3_u32 v{T0}, v{T0}, v{IN+3}, v{IN+4}")
        a(f"v_mfma_f32_16x16x32_bf16 v[{RR}:{RR+3}], v[{SEL}:{SEL+3}], v[{IN}:{IN+3}], 0")
        a(f"v_max3_u32 v{T1}, v{IN+5}, v{IN+6}, v{IN+7}")
        a(f"v_mfma_f32_16x16x32_bf16 v[{RR}:{RR+3}], v[{SEL}:{SEL+3}], v[{IN+4}:{IN+7}], v[{RR}:{RR+3}]")
        a(f"v_max_u32 v{T0}, v{T0}, v{T1}\nv_cmp_eq_u32 vcc, -1, v{T0}")
        a("s_cselect_b64 exec, vcc, 0")
        a(f"s_cbranch_execnz {loopB}")
        a("s_mov_b64 exec, -1")
        self.nstamp('pollB')
        for ror in (4, 8):
            for i in range(4): a(f"v_add_f32_dpp v{RR+i}, v{RR+i}, v{RR+i} row_ror:{ror} row_mask:0xf bank_mask:0xf")
        a(f"v_cvt_pk_bf16_f32 v{RR}, v{RR}, v{RR+1}\nv_cvt_pk_bf16_f32 v{RR+1}, v{RR+2}, v{RR+3}")
        a("s_mov_b64 exec, 0x00ff00ff")
        a(f"v_cndmask_b32 v{RR}, v{RR}, v{RR+1}, s[{self.sN4}:{self.sN4+1}]\nv_min_u32 v{RR}, -2, v{RR}")
        a(f"global_store_dword v{MST}, v{RR}, s[{self.sMEM[q]}:{self.sMEM[q]+1}]{self.flavor}")
        a("s_mov_b64 exec, -1")
        self.nstamp('end')
        if self.stamps and self.PERSTEP:
            a("s_waitcnt lgkmcnt(0)")
            a(f"s_lshl_b32 s100, s{S_RANK}, 2\ns_add_u32 s100, s100, s{S_WAVE}\ns_lshl_b32 s100, s100, 6\ns_add_u32 s100, s100, s{self.sSTEP}\ns_lshl_b32 s100, s100, 5\ns_add_u32 s100, s100, {OFF_TRACE + 0x100000}")
            for i in range(8): a(f"v_mov_b32 v{XF+i}, s{self.sST+2*i}")
            a(f"v_mov_b32 v{T0}, s100\ns_mov_b64 exec, 1")
            a(f"global_store_dwordx4 v{T0}, v[{XF}:{XF+3}], s[{S_WS}:{S_WS+1}]\nglobal_store_dwordx4 v{T0}, v[{XF+4}:{XF+7}], s[{S_WS}:{S_WS+1}] offset:16")
            a("s_mov_b64 exec, -1")
        if self.stamps:
            a("s_waitcnt lgkmcnt(0)")
            for i in range(7):
                a(f"s_sub_u32 s{self.sT}, s{self.sST+2*i+2}, s{self.sST+2*i}\ns_add_u32 s{6+i}, s{6+i}, s{self.sT}")
        a(f"s_add_u32 s{self.sSTEP}, s{self.sSTEP}, 1")
        a.auto_lgkm = False

    def body(self, dbg_off):
        a = self.a
        rtstamp(a, 0)
        self.dbg_off = dbg_off
        self.setup(); self.announce(dbg_off); self.comm_init()
        a(f"s_mov_b32 s{self.sSTEP}, 0\ns_mov_b32 s{self.sUPTO}, 0\ns_mov_b32 s{self.sSPIN}, 0")
        rtstamp(a, 1)
        self.load_weights()
        rtstamp(a, 2); rtstamp(a, 3); rtstamp(a, 4)
        if self.stamps:
            for i in range(8): a(f"s_mov_b32 s{6+i}, 0")
            a("s_memtime s[14:15]\ns_waitcnt lgkmcnt(0)")
        done, remote = a.newlabel('Ldone'), a.newlabel('Lremote')
        a(f"s_cmp_lg_u32 s{S_LOCAL}, 1\ns_cbranch_scc1 {remote}")
        for flavor in ('', ' sc1'):
            self.flavor = flavor
            if flavor: a.label(remote)
            loop = a.newlabel('Lrec')
            a.label(loop)
            self.step(0, done, done)
            self.step(1, done, done)
            a(f"s_branch {loop}")
            for f in self.ool: f()
            self.ool = []
        a.label(done)
        a("s_nop 7")
        for g in self.pub_groups():
            for x in g: a(x)
        a("s_waitcnt vmcnt(0)")
        if self.flags:
            for k in range(2):
                for g in self.flag_groups():
                    for x in g: a(x)
        rtstamp(a, 5)
        if self.stamps:
            T = self.sT
            a(f"s_memtime s[{T}:{T+1}]\ns_waitcnt lgkmcnt(0)\ns_sub_u32 s13, s{T}, s14")
            a(f"s_lshl_b32 s{T}, s{S_RANK}, 2\ns_add_u32 s{T}, s{T}, s{S_WAVE}\ns_lshl_b32 s{T}, s{T}, 6\ns_add_u32 s{T}, s{T}, {OFF_TRACE}\nv_mov_b32 v1, s{T}")
            for i in range(8): a(f"v_mov_b32 v{16+i}, s{6+i}")
            a(f"v_mov_b32 v24, s{self.sSTEP}")
            a("s_mov_b64 exec, 1")
            a(f"global_store_dwordx4 v1, v[16:19], s[{S_WS}:{S_WS+1}]\nglobal_store_dwordx4 v1, v[20:23], s[{S_WS}:{S_WS+1}] offset:16\nglobal_store_dword v1, v24, s[{S_WS}:{S_WS+1}] offset:32")
            a("s_waitcnt vmcnt(0)")
```

```python
import sys
from asmlib import *
from rec import *
from rec4 import Rec4 as Rec2
from gemm1 import Gemm1
from attn import *
NAME = "gated_mix__sliding_block__memory_aug_recurrent_mem_tr__prompt_kernel"
S_WI = 8
SPIN = 10

def wait_init(a, va, vb, st):
    l, ld = a.newlabel('Lwi'), a.newlabel('Lwi')
    a(f"v_mov_b32 v{va}, {DBG_INIT}\ns_mov_b32 s{st+1}, 0")
    a.label(l)
    a(f"global_load_dword v{vb}, v{va}, s[{S_DBG}:{S_DBG+1}] sc1")
    a(f"s_add_u32 s{st+1}, s{st+1}, 1\ns_cmp_gt_u32 s{st+1}, 0x100000\ns_cbranch_scc1 {ld}")
    a(f"s_waitcnt vmcnt(0)\nv_readfirstlane_b32 s{st}, v{vb}\ns_cmp_lt_u32 s{st}, 8\ns_cbranch_scc1 {l}")
    a.label(ld)

def wait_flag(a, va, vb, s_idx, base, mask, target, st, sleep=4, s_sub=None):
    l, ld = a.newlabel('Lwf'), a.newlabel('Lwf')
    a(f"s_lshl_b32 s{st}, s{s_idx}, 7\ns_add_u32 s{st}, s{st}, {base}")
    if s_sub is not None:
        a(f"s_lshl_b32 s{SPIN}, s{s_sub}, 2\ns_add_u32 s{st}, s{st}, s{SPIN}")
    a(f"v_mov_b32 v{va}, s{st}\ns_mov_b32 s{SPIN}, 0")
    a.label(l)
    a(f"global_load_dword v{vb}, v{va}, s[{S_WS}:{S_WS+1}] sc1")
    a(f"s_add_u32 s{SPIN}, s{SPIN}, 1\ns_cmp_gt_u32 s{SPIN}, 0x80000\ns_cbranch_scc1 {ld}")
    a(f"s_waitcnt vmcnt(0)\nv_readfirstlane_b32 s{st}, v{vb}\ns_and_b32 s{st}, s{st}, {mask}\ns_cmp_eq_u32 s{st}, {target}\ns_cbranch_scc1 {ld}")
    a(f"s_sleep {sleep}\ns_branch {l}")
    a.label(ld)

def signal(a, va, vb, s_idx, base, st):
    a(f"s_lshl_b32 s{st}, s{s_idx}, 7\ns_add_u32 s{st}, s{st}, {base}\nv_mov_b32 v{va}, s{st}\nv_mov_b32 v{vb}, 1")
    a("s_mov_b64 exec, 1")
    a(f"global_atomic_add v{va}, v{vb}, s[{S_WS}:{S_WS+1}]")
    a("s_mov_b64 exec, -1")

def build(stamps=False, name=NAME, noworkers=False):
    a = Asm()
    RT_ON[0] = stamps
    a.raw("; @launch grid=(256,1,1) block=(256,1,1) lds=163840")
    a.raw('.amdgcn_target "amdgcn-amd-amdhsa--gfx950"\n.text')
    a.raw(f".globl {name}\n.p2align 8\n.type {name},@function\n{name}:")
    a("s_cmp_ge_u32 s2, 256\ns_cbranch_scc1 L_end")
    prologue_common(a)
    a("s_and_b32 s6, s2, 7\ns_cmp_lg_u32 s6, 0\ns_cbranch_scc1 L_worker")
    a(f"s_lshr_b32 s{S_RANK}, s2, 3")
    Rec2(a, stamps=stamps, flags=not noworkers, wait_init=wait_init).body(DBG_BAR)
    a("s_endpgm")
    a.label("L_worker")
    if noworkers: a("s_endpgm")
    a(f"s_lshr_b32 s{S_WI}, s2, 3\ns_mul_i32 s{S_WI}, s{S_WI}, 7\ns_add_u32 s{S_WI}, s{S_WI}, s6\ns_sub_u32 s{S_WI}, s{S_WI}, 1")
    a(f"s_cmp_lt_u32 s{S_WI}, 216\ns_cbranch_scc1 L_gemm1")
    a(f"s_sub_u32 s6, s{S_WI}, 216\ns_lshl_b32 s6, s6, 2\ns_add_u32 s6, s6, s{S_WAVE}\ns_mul_i32 s6, s6, 10240\ns_add_u32 s6, s6, {OFF_FLAG}\nv_lshlrev_b32 v1, 4, v0\nv_add_u32 v1, s6, v1")
    for i in range(4): a(f"v_mov_b32 v{4+i}, 0")
    for i in range(10):
        if i and i % 4 == 0: a("v_add_u32 v1, 4096, v1")
        a(f"global_store_dwordx4 v1, v[4:7], s[{S_WS}:{S_WS+1}] offset:{(i%4)*1024} sc1")
    a("s_waitcnt vmcnt(0)\ns_barrier")
    a(f"s_cmp_lg_u32 s{S_WAVE}, 0\ns_cbranch_scc1 L_noinit")
    a(f"v_mov_b32 v1, {DBG_INIT}\nv_mov_b32 v2, 1\ns_mov_b64 exec, 1")
    a(f"global_atomic_add v1, v2, s[{S_DBG}:{S_DBG+1}]\ns_mov_b64 exec, -1")
    a.label("L_noinit")
    wait_init(a, 1, 2, 44)
    a("s_branch L_phase2")
    a.label("L_gemm1")
    rtstamp(a, 0)
    a(f"s_mul_i32 s7, s{S_WI}, 1214\ns_lshr_b32 s7, s7, 16\ns_mul_i32 s6, s7, 54\ns_sub_u32 s6, s{S_WI}, s6")
    Gemm1(a, st_flavor=" sc1", flags=True, wait_init=wait_init).body()
    a.label("L_phase2")
    rtstamp(a, 2)
    a(f"s_cmp_lt_u32 s{S_WI}, 64\ns_cbranch_scc1 L_stage2")
    a(f"s_cmp_lt_u32 s{S_WI}, 128\ns_cbranch_scc1 L_xattn")
    a(f"s_sub_u32 s9, s{S_WI}, 128\ns_lshl_b32 s9, s9, 2\ns_add_u32 s9, s9, s{S_WAVE}")
    aa = AttnA(a, " sc1", " sc1"); aa.setup()
    a.label("L_aa_loop")
    a("s_and_b32 s6, s9, 15\ns_lshr_b32 s7, s9, 4")
    l, ld = a.newlabel('Lwa'), a.newlabel('Lwa')
    a(f"v_add_u32 v8, s7, v0\nv_subrev_u32 v8, 8, v8\nv_max_i32 v8, 0, v8\nv_lshlrev_b32 v8, 7, v8\nv_add_u32 v8, {OFF_FA1}, v8\ns_mov_b32 s{SPIN}, 0")
    a("s_mov_b64 exec, 0x1ff")
    a.label(l)
    a(f"global_load_dword v9, v8, s[{S_WS}:{S_WS+1}] sc1")
    a(f"s_add_u32 s{SPIN}, s{SPIN}, 1\ns_cmp_gt_u32 s{SPIN}, 0x80000\ns_cbranch_scc1 {ld}")
    a(f"s_waitcnt vmcnt(0)\nv_cmp_ne_u32 vcc, 6, v9\ns_cbranch_vccz {ld}\ns_sleep 8\ns_branch {l}")
    a.label(ld)
    a("s_mov_b64 exec, -1")
    aa.task()
    a("s_waitcnt vmcnt(0)")
    signal(a, 8, 9, 7, OFF_FAA, 76)
    a("s_add_u32 s9, s9, 384\ns_cmp_lt_u32 s9, 1024\ns_cbranch_scc1 L_aa_loop")
    rtstamp(a, 3)
    a("s_endpgm")
    a.label("L_xattn")
    a("s_barrier")
    a(f"s_sub_u32 s9, s{S_WI}, 64\ns_lshl_b32 s9, s9, 2\ns_add_u32 s9, s9, s{S_WAVE}\ns_and_b32 s6, s9, 31\ns_lshr_b32 s7, s9, 5")
    xa = AttnX(a, " sc1", " sc1"); xa.setup()
    a.label("L_xa_loop")
    wait_flag(a, 252, 253, 7, OFF_FKV, 0xffff, 32, 76)
    wait_flag(a, 252, 253, 7, OFF_FQ, 0xffff, 16, 76)
    xa.load_x()
    l, ld = a.newlabel('Lwm'), a.newlabel('Lwm')
    a(f"s_lshl_b32 s76, s7, 5\ns_add_u32 s76, s76, s6\ns_lshl_b32 s76, s76, 7\ns_add_u32 s76, s76, {OFF_FM}\nv_lshlrev_b32 v252, 2, v0\nv_add_u32 v252, s76, v252\ns_mov_b32 s{SPIN}, 0")
    a("s_mov_b64 exec, 15")
    a.label(l)
    a(f"global_load_dword v253, v252, s[{S_WS}:{S_WS+1}] sc1")
    a(f"s_add_u32 s{SPIN}, s{SPIN}, 1\ns_cmp_gt_u32 s{SPIN}, 0x80000\ns_cbranch_scc1 {ld}")
    a(f"s_waitcnt vmcnt(0)\nv_cmp_ne_u32 vcc, 1, v253\ns_cbranch_vccz {ld}\ns_sleep 4\ns_branch {l}")
    a.label(ld)
    a("s_mov_b64 exec, -1")
    xa.load_m(); xa.compute()
    a("s_waitcnt vmcnt(0)")
    signal(a, 252, 253, 7, OFF_FX, 76)
    a("s_add_u32 s7, s7, 8\ns_cmp_lt_u32 s7, 64\ns_cbranch_scc1 L_xa_loop")
    rtstamp(a, 3)
    a("s_endpgm")
    a.label("L_stage2")
    a("s_barrier")
    a(f"s_and_b32 s6, s{S_WI}, 15\ns_lshr_b32 s7, s{S_WI}, 4")
    def wt(s2):
        a(f"s_lshr_b32 s11, s{s2.sTILE}, 1")
        wait_flag(a, 1, 2, 11, OFF_FAA, 0xffff, 16, 44)
        wait_flag(a, 1, 2, 11, OFF_FX, 0xffff, 32, 44, sleep=4)
    Stage2(a, 4, wait_tile=wt, ld_flavor=" sc1").body()
    rtstamp(a, 3)
    a.label("L_end")
    a("s_endpgm")
    a.raw('.section .rodata,"a"\n.p2align 6')
    a.raw(f'.amdhsa_kernel {name}')
    a.raw("  .amdhsa_next_free_vgpr 512\n  .amdhsa_next_free_sgpr 102\n  .amdhsa_accum_offset 256\n  .amdhsa_group_segment_fixed_size 0\n  .amdhsa_kernarg_size 112")
    a.raw("  .amdhsa_user_sgpr_count 2\n  .amdhsa_user_sgpr_kernarg_segment_ptr 1\n  .amdhsa_system_sgpr_workgroup_id_x 1\n.end_amdhsa_kernel")
    return a.text()
if __name__ == "__main__":
    open("../merged.s", "w").write(build())
    open("../merged_st.s", "w").write(build(stamps=True))
    for nm, st in (("A", ['pollA', 'b1', 'g0', 'g7', 'g15', 'g23', 'qk_end', 'b2pre']),
                   ("B", ['qk_end', 'b2pre', 'b2', 'v_end', 's_end', 'sm_end', 'b3pre', 'b3v']),
                   ("C", ['b3v', 'b3', 'oex', 'ost', 'pollB', 'end', 'zz1', 'zzz'])):
        Rec2.STAMPS = st
        open(f"../merged_st{nm}.s", "w").write(build(stamps=True))
    Rec2.STAMPS = ['pre', 'pollA', 'qk_end', 'v_end', 'sm_end', 'oex', 'ost', 'pollB']
    Rec2.PERSTEP = True
    open("../merged_stP.s", "w").write(build(stamps=True))
    Rec2.PERSTEP = False
    open("../merged_stN.s", "w").write(build(stamps=True, noworkers=True))
```

```python
from asmlib import *
from layout import *
from rec import RT_ON, S_AX, S_AWO, S_WO, S_GW, S_OUT, S_WS, S_WAVE, sadd64
import math, struct
def f32bits(x): return "0x%08x" % struct.unpack('<I', struct.pack('<f', x))[0]
NEG = "0xf149f2ca"

class AttnA:
    def __init__(self, a, st_flavor="", ld_flavor=""):
        self.a = a; self.st = st_flavor; self.ld = ld_flavor
        self.sM = 44
        self.sT = 76
        self.sC = 84
        self.sQ, self.sK, self.sV, self.sO = 86, 88, 90, 92
    def setup(self):
        a = self.a
        a("v_lshlrev_b32 v1, 4, v0")
        a("v_and_b32 v2, 31, v0\nv_lshrrev_b32 v3, 5, v0\nv_lshlrev_b32 v3, 2, v3\nv_sub_u32 v2, v2, v3")
        for r in range(16):
            a(f"v_cmp_gt_i32 s[{self.sM+2*r}:{self.sM+2*r+1}], {8*(r>>2)+(r&3)}, v2")
        a(f"s_mov_b32 s{self.sC}, {f32bits(0.25*math.log2(math.e))}")
        a("v_bfe_u32 v2, v0, 4, 1\nv_lshlrev_b32 v2, 14, v2\nv_lshrrev_b32 v3, 5, v0\nv_lshl_add_u32 v2, v3, 8, v2\nv_and_b32 v3, 15, v0\nv_lshl_add_u32 v2, v3, 4, v2")
        a(f"v_mov_b32 v3, {NEG}")
        for i in range(4): a(f"v_mov_b32 v{4+i}, 0x3f803f80")
    def task(self):
        a = self.a; T = self.sT; hp, tt = 6, 7
        ONES, QF, KF, S, O, L, M, TT = 4, 8, 16, 64, 208, 224, 240, 241
        VF = 0
        for kt in range(9):
            a(f"s_sub_i32 s{T}, s{tt}, {8-kt}\ns_max_i32 s{T}, s{T}, 0\ns_lshl_b32 s{T}, s{T}, 15\ns_lshl_b32 s{T+1}, s{hp}, 11\ns_add_u32 s{T}, s{T}, s{T+1}")
            sadd64(a, self.sV, S_WS, T, OFF_VAF)
            sadd64(a, self.sK, S_WS, T, OFF_KAF)
            for u in range(2):
                a(f"global_load_dwordx4 a[{VF+8*kt+4*u}:{VF+8*kt+4*u+3}], v1, s[{self.sV}:{self.sV+1}] offset:{u*1024}{self.ld}")
            for x in range(2):
                a(f"global_load_dwordx4 a[{72+36*x+4*kt}:{72+36*x+4*kt+3}], v1, s[{self.sK}:{self.sK+1}] offset:{x*1024}{self.ld}")
        sadd64(a, self.sQ, S_WS, T, OFF_QAF)
        for x in range(2):
            a(f"global_load_dwordx4 v[{QF+4*x}:{QF+4*x+3}], v1, s[{self.sQ}:{self.sQ+1}] offset:{x*1024}{self.ld}")
        a(f"s_lshl_b32 s{T}, s{tt}, 15\ns_lshl_b32 s{T+1}, s{hp}, 10\ns_add_u32 s{T}, s{T}, s{T+1}")
        sadd64(a, self.sO, S_WS, T, OFF_OAF)
        a("s_waitcnt vmcnt(0)")
        for x in range(2):
            for kt in range(9):
                lskip, lnext = a.newlabel('Laa'), a.newlabel('Laa')
                if kt < 8:
                    a(f"s_cmp_lt_u32 s{tt}, {8-kt}\ns_cbranch_scc1 {lskip}")
                a(f"v_mfma_f32_32x32x16_bf16 v[{S+16*kt}:{S+16*kt+15}], a[{72+36*x+4*kt}:{72+36*x+4*kt+3}], v[{QF+4*x}:{QF+4*x+3}], 0")
                if kt < 8:
                    a(f"s_branch {lnext}")
                    a.label(lskip)
                    for r in range(16): a(f"v_mov_b32 v{S+16*kt+r}, v3")
                    a.label(lnext)
            a("s_nop 15")
            for r in range(16):
                m = f"s[{self.sM+2*r}:{self.sM+2*r+1}]"
                a(f"v_cndmask_b32 v{S+r}, v3, v{S+r}, {m}")
                a(f"v_cndmask_b32 v{S+128+r}, v{S+128+r}, v3, {m}")
            a(f"v_max3_f32 v{M}, v{S}, v{S+1}, v{S+2}\nv_max3_f32 v{TT}, v{S+3}, v{S+4}, v{S+5}")
            r = 6
            while r < 144 - 3:
                a(f"v_max3_f32 v{M}, v{M}, v{S+r}, v{S+r+1}\nv_max3_f32 v{TT}, v{TT}, v{S+r+2}, v{S+r+3}"); r += 4
            a(f"v_max3_f32 v{M}, v{M}, v{S+142}, v{S+143}\nv_max_f32 v{M}, v{M}, v{TT}")
            a(f"v_mov_b32 v{TT}, v{M}\nv_permlane32_swap_b32 v{M}, v{TT}\nv_max_f32 v{M}, v{M}, v{TT}")
            a(f"v_mul_f32 v{M}, s{self.sC}, v{M}")
            for kt in range(9):
                b = S + 16*kt
                for r in range(16): a(f"v_fma_f32 v{b+r}, v{b+r}, s{self.sC}, -v{M}")
                for r in range(16): a(f"v_exp_f32 v{b+r}, v{b+r}")
                for r in range(8): a(f"v_cvt_pk_bf16_f32 v{b+r}, v{b+2*r}, v{b+2*r+1}")
                for u in range(2):
                    c0 = "0" if (kt == 0 and u == 0) else None
                    a(f"v_mfma_f32_32x32x16_bf16 v[{O}:{O+15}], a[{VF+8*kt+4*u}:{VF+8*kt+4*u+3}], v[{b+4*u}:{b+4*u+3}], " + (c0 or f"v[{O}:{O+15}]"))
                    a(f"v_mfma_f32_32x32x16_bf16 v[{L}:{L+15}], v[{ONES}:{ONES+3}], v[{b+4*u}:{b+4*u+3}], " + (c0 or f"v[{L}:{L+15}]"))
            a(f"v_rcp_f32 v{M}, v{L}")
            for i in range(8): a(f"v_mul_f32 v{O+8*x+i}, v{O+8*x+i}, v{M}")
            for i in range(4): a(f"v_cvt_pk_bf16_f32 v{244+i}, v{O+8*x+2*i}, v{O+8*x+2*i+1}")
            a(f"global_store_dwordx4 v2, v[244:247], s[{self.sO}:{self.sO+1}] offset:{x*512}{self.st}")

class AttnX:
    def __init__(self, a, st_flavor="", ld_flavor=""):
        self.a = a; self.st = st_flavor; self.ld = ld_flavor
        self.sM = 44
        self.sHI = 52
        self.sT = 76; self.sC = 84
        self.sQ, self.sK, self.sV, self.sO, self.sKM, self.sLB = 86, 88, 90, 92, 94, 96
    def setup(self):
        a = self.a
        a("v_lshlrev_b32 v1, 4, v0")
        a("v_and_b32 v2, 15, v0\nv_lshrrev_b32 v3, 4, v0\nv_lshlrev_b32 v3, 2, v3\nv_sub_u32 v2, v2, v3")
        for i in range(4):
            a(f"v_cmp_gt_i32 s[{self.sM+2*i}:{self.sM+2*i+1}], {i}, v2")
        a(f"v_cmp_le_u32 s[{self.sHI}:{self.sHI+1}], 32, v0")
        a(f"s_mov_b32 s{self.sC}, {f32bits((128**-0.5)*math.log2(math.e))}")
        a(f"v_mov_b32 v3, {NEG}")
        for i in range(4): a(f"v_mov_b32 v{4+i}, 0x3f803f80")
        for i in range(4): a(f"v_cndmask_b32 v{8+i}, 0, v3, s[{self.sHI}:{self.sHI+1}]")
        a(f"s_lshl_b32 s{self.sLB}, s{S_WAVE}, 12")
        a("v_and_b32 v12, 1, v0\nv_lshlrev_b32 v12, 8, v12\nv_lshrrev_b32 v13, 2, v0\nv_lshl_add_u32 v12, v13, 4, v12")
        a(f"v_add_u32 v12, s{self.sLB}, v12")
        a(f"v_and_b32 v13, 31, v0\nv_lshlrev_b32 v13, 4, v13\nv_add_u32 v13, 8, v13\nv_add_u32 v13, s{self.sLB}, v13")
        a("v_add_u32 v14, 4096, v1")
    def load_x(self):
        a = self.a; T = self.sT; h, s = 6, 7
        QF, KF, VF = 16, 48, 80
        a(f"s_lshl_b32 s{T}, s{h}, 6\ns_add_u32 s{T}, s{T}, s{s}\ns_lshl_b32 s{T+1}, s{T}, 13")
        sadd64(a, self.sQ, S_WS, T+1, OFF_QXF); sadd64(a, self.sK, S_WS, T+1, OFF_KXF); sadd64(a, self.sV, S_WS, T+1, OFF_VXF)
        a(f"s_add_u32 s{T+1}, s{T}, s{h}\ns_lshl_b32 s{T+1}, s{T+1}, 12")
        sadd64(a, self.sKM, S_WS, T+1, OFF_KVM + 4096)
        for (base, sb) in ((QF, self.sQ), (KF, self.sK), (VF, self.sV)):
            for i in range(8):
                a(f"global_load_dwordx4 v[{base+4*i}:{base+4*i+3}], v{1 if i < 4 else 14}, s[{sb}:{sb+1}] offset:{(i%4)*1024}{self.ld}")
        a(f"s_lshl_b32 s{T}, s{s}, 18\ns_lshl_b32 s{T+1}, s{h}, 12\ns_add_u32 s{T}, s{T}, s{T+1}")
        sadd64(a, self.sO, S_WS, T, OFF_OXF)
    def load_m(self):
        a = self.a
        KM, VM = 112, 128
        a(f"s_mov_b32 m0, s{self.sLB}\ns_nop 0")
        for kk in range(4):
            a(f"global_load_lds_dwordx4 v1, s[{self.sKM}:{self.sKM+1}] offset:{kk*1024}{self.ld}")
        a("s_waitcnt vmcnt(0)")
        for kk in range(4):
            for rho in range(2):
                a(f"ds_read_b64_tr_b16 v[{KM+4*kk+2*rho}:{KM+4*kk+2*rho+1}], v12 offset:{kk*1024 + rho*512}")
        for t in range(8):
            a(f"ds_read_b64 v[{VM+2*t}:{VM+2*t+1}], v13 offset:{t*512}")
        a("s_waitcnt lgkmcnt(0)")
    def compute_pre(self):
        a = self.a
        QF, KF, S = 16, 48, 144
        a("s_waitcnt vmcnt(0)")
        tiles = [(0, 0, S), (1, 0, S+8), (1, 1, S+12)]
        for kk in range(4):
            for (b, kt, d) in tiles:
                A_ = KF + 16*kt + 4*kk; B_ = QF + 16*b + 4*kk
                a(f"v_mfma_f32_16x16x32_bf16 v[{d}:{d+3}], v[{A_}:{A_+3}], v[{B_}:{B_+3}], " + ("0" if kk == 0 else f"v[{d}:{d+3}]"))
        for d in (S, S+12):
            for i in range(4):
                a(f"v_cndmask_b32 v{d+i}, v{d+i}, v3, s[{self.sM+2*i}:{self.sM+2*i+1}]")
        a(f"v_max3_f32 v164, v{S}, v{S+1}, v{S+2}\nv_max_f32 v164, v164, v{S+3}")
        a(f"v_max3_f32 v165, v{S+8}, v{S+9}, v{S+10}\nv_max3_f32 v165, v165, v{S+11}, v{S+12}\nv_max3_f32 v165, v165, v{S+13}, v{S+14}\nv_max_f32 v165, v165, v{S+15}")
        a("v_mov_b32 v170, 0\nv_mov_b32 v171, 0")
    def compute(self):
        a = self.a
        ONES, CM, QF, VF, KM, VM = 4, 8, 16, 80, 112, 128
        S = 144
        Ms, Ts = (164, 165), (166, 167)
        PX, PM = (168, 176), (172, 180)
        O, L = (184, 48), (248, 244)
        for kk in range(4):
            for b, d in ((0, S+4), (1, S+16)):
                B_ = QF + 16*b + 4*kk
                a(f"v_mfma_f32_16x16x32_bf16 v[{d}:{d+3}], v[{KM+4*kk}:{KM+4*kk+3}], v[{B_}:{B_+3}], " + (f"v[{CM}:{CM+3}]" if kk == 0 else f"v[{d}:{d+3}]"))
        R = (list(range(S, S+8)), list(range(S+8, S+20)))
        for b, d in ((0, S+4), (1, S+16)):
            a(f"v_max3_f32 v{Ms[b]}, v{Ms[b]}, v{d}, v{d+1}\nv_max3_f32 v{Ms[b]}, v{Ms[b]}, v{d+2}, v{d+3}")
        for sw in ("v_permlane32_swap_b32", "v_permlane16_swap_b32"):
            for b in range(2): a(f"v_mov_b32 v{Ts[b]}, v{Ms[b]}")
            for b in range(2): a(f"{sw} v{Ms[b]}, v{Ts[b]}")
            for b in range(2): a(f"v_max_f32 v{Ms[b]}, v{Ms[b]}, v{Ts[b]}")
        for b in range(2): a(f"v_mul_f32 v{Ms[b]}, s{self.sC}, v{Ms[b]}")
        for b in range(2):
            for r in R[b]: a(f"v_fma_f32 v{r}, v{r}, s{self.sC}, -v{Ms[b]}")
            for r in R[b]: a(f"v_exp_f32 v{r}, v{r}")
            if b == 0:
                a(f"v_cvt_pk_bf16_f32 v{PX[0]}, v{S}, v{S+1}\nv_cvt_pk_bf16_f32 v{PX[0]+1}, v{S+2}, v{S+3}")
                a(f"v_cvt_pk_bf16_f32 v{PM[0]}, v{S+4}, v{S+5}\nv_cvt_pk_bf16_f32 v{PM[0]+1}, v{S+6}, v{S+7}")
            else:
                for i in range(6): a(f"v_cvt_pk_bf16_f32 v{PX[1]+i}, v{S+8+2*i}, v{S+9+2*i}")
            a(f"v_mfma_f32_16x16x32_bf16 v[{L[b]}:{L[b]+3}], v[{ONES}:{ONES+3}], v[{PX[b]}:{PX[b]+3}], 0")
            for t in range(8):
                a(f"v_mfma_f32_16x16x32_bf16 v[{O[b]+4*t}:{O[b]+4*t+3}], v[{VF+4*t}:{VF+4*t+3}], v[{PX[b]}:{PX[b]+3}], 0")
            a(f"v_mfma_f32_16x16x16_bf16 v[{L[b]}:{L[b]+3}], v[{ONES}:{ONES+1}], v[{PM[b]}:{PM[b]+1}], v[{L[b]}:{L[b]+3}]")
            for t in range(8):
                a(f"v_mfma_f32_16x16x16_bf16 v[{O[b]+4*t}:{O[b]+4*t+3}], v[{VM+2*t}:{VM+2*t+1}], v[{PM[b]}:{PM[b]+1}], v[{O[b]+4*t}:{O[b]+4*t+3}]")
        for b in range(2):
            a(f"v_rcp_f32 v{Ts[0]}, v{L[b]}")
            for u in range(4):
                for i in range(0, 8, 2):
                    a(f"v_pk_mul_f32 v[{O[b]+8*u+i}:{O[b]+8*u+i+1}], v[{O[b]+8*u+i}:{O[b]+8*u+i+1}], v[{Ts[0]}:{Ts[0]+1}] op_sel_hi:[1,0]")
                d = 216 + 4*u if b == 0 else 16 + 4*u
                for i in range(4): a(f"v_cvt_pk_bf16_f32 v{d+i}, v{O[b]+8*u+2*i}, v{O[b]+8*u+2*i+1}")
                a(f"global_store_dwordx4 v1, v[{d}:{d+3}], s[{self.sO}:{self.sO+1}] offset:{u*1024}{self.st}")
            if b == 0:
                sadd64(a, self.sO, self.sO, imm=131072)

class Stage2:
    def __init__(self, a, nrep, wait_tile=None, ld_flavor=""):
        self.a = a; self.R = nrep; self.wait_tile = wait_tile; self.ld = ld_flavor
        self.sT = 44
        self.sWB = 52; self.sW = 54; self.sOX = 56; self.sOA = 58; self.sXG = 60; self.sOUTP = 62
        self.sTILE = 64; self.sBUF = 65; self.sCNT = 66
    def ts(self, k):
        if not RT_ON[0]: return
        a = self.a
        l = a.newlabel('Lts')
        a(f"s_cmp_lg_u32 s{S_WAVE}, 0\ns_cbranch_scc1 {l}")
        a("s_memrealtime s[100:101]\ns_waitcnt lgkmcnt(0)")
        a(f"s_lshl_b32 s101, s2, 5\ns_add_u32 s101, s101, s{self.sCNT}\ns_lshl_b32 s101, s101, 4\ns_add_u32 s101, s101, {OFF_TRACE + 0x200000 + 4*k}")
        a(f"v_mov_b32 v11, s101\nv_mov_b32 v12, s100\ns_mov_b64 exec, 1")
        a(f"global_store_dword v11, v12, s[{S_WS}:{S_WS+1}]\ns_mov_b64 exec, -1")
        a.label(l)
    def body(self):
        a = self.a; T = self.sT; w = S_WAVE; cg, rep = 6, 7
        T0, T1, L16, VW, VTB, VTA, VXL, VOUT, VRW, VRR = 1, 2, 3, 4, 5, 6, 7, 8, 9, 10
        WA = 16
        GW = 48
        OF = 64
        ACC = 224
        a(f"v_lshlrev_b32 v{L16}, 4, v0")
        a(f"v_lshrrev_b32 v{T0}, 2, v0\nv_and_b32 v{T1}, 3, v0\nv_lshlrev_b32 v{T1}, 4, v{T1}\nv_lshl_add_u32 v{VW}, v{T0}, 10, v{T1}")
        a(f"s_lshl_b32 s{self.sWB}, s{w}, 15")
        a(f"v_lshrrev_b32 v{T0}, 2, v0\nv_lshlrev_b32 v{VTB}, 6, v{T0}\nv_add_u32 v{VTB}, v{VTB}, v{T1}\nv_add_u32 v{VTB}, s{self.sWB}, v{VTB}")
        a(f"v_lshrrev_b32 v{T0}, 5, v0\nv_lshl_add_u32 v{VTA}, v{T0}, 9, v{VTB}")
        def issue(n):
            slot = n % 8
            if n == 0:
                a(f"s_lshl_b32 s{T}, s{w}, 20\ns_lshl_b32 s{T+1}, s{cg}, 6\ns_add_u32 s{T}, s{T}, s{T+1}")
                sadd64(a, self.sW, S_WO, T)
            if n == 16:
                a(f"s_lshl_b32 s{T}, s{w}, 17\ns_lshl_b32 s{T+1}, s{cg}, 6\ns_add_u32 s{T}, s{T}, s{T+1}")
                sadd64(a, self.sW, S_AWO, T)
            for i in range(4):
                a(f"s_add_u32 m0, s{self.sWB}, {slot*4096 + i*1024}\ns_nop 0")
                a(f"global_load_lds_dwordx4 v{VW}, s[{self.sW}:{self.sW+1}]")
                sadd64(a, self.sW, self.sW, imm=16384)
        def consume(n):
            slot = n % 8
            for k2 in range(2):
                for t in range(2):
                    for rho in range(2):
                        if n < 16:
                            r = ((2*n + k2)*2 + t)*4 + 2*rho
                            off = slot*4096 + (32*k2 + 16*rho)*64 + t*8
                            a(f"ds_read_b64_tr_b16 a[{r}:{r+1}], v{VTB} offset:{off}")
                        else:
                            r = WA + ((2*(n-16) + k2)*2 + t)*4 + 2*rho
                            off = slot*4096 + (32*k2 + 8*rho)*64 + t*8
                            a(f"ds_read_b64_tr_b16 v[{r}:{r+1}], v{VTA} offset:{off}")
            a("s_waitcnt lgkmcnt(0)")
        for n in range(8): issue(n)
        a(f"v_lshrrev_b32 v{T0}, 4, v0\nv_lshlrev_b32 v{T0}, 4, v{T0}\ns_lshl_b32 s{T}, s{w}, 8\nv_add_u32 v{T0}, s{T}, v{T0}")
        a(f"v_and_b32 v{T1}, 15, v0\nv_lshl_add_u32 v{VXL}, v{T1}, 10, v{T0}")
        for n in range(18):
            outstanding = min(18, n + 8) - n
            a(f"s_waitcnt vmcnt({4*(outstanding-1)})")
            consume(n)
            if n + 8 < 18: issue(n + 8)
        for kk in range(4):
            a(f"global_load_dwordx4 v[{GW+4*kk}:{GW+4*kk+3}], v{T0}, s[{S_GW}:{S_GW+1}] offset:{kk*64}")
        a(f"v_lshrrev_b32 v{T0}, 4, v0\nv_lshlrev_b32 v{T0}, 4, v{T0}\nv_lshl_add_u32 v{VOUT}, v{T1}, 10, v{T0}\ns_lshl_b32 s{T}, s{cg}, 6\nv_add_u32 v{VOUT}, s{T}, v{VOUT}")
        a(f"s_mul_i32 s{T}, s{w}, 5120\nv_add_u32 v{VRW}, s{T}, v{L16}")
        a(f"s_mov_b32 s{self.sTILE}, s{rep}\ns_mov_b32 s{self.sBUF}, 0\ns_mov_b32 s{self.sCNT}, 0")
        a("s_waitcnt vmcnt(0)\ns_barrier")
        loop, lskip = a.newlabel('Ls2'), a.newlabel('Ls2s')
        a.label(loop)
        self.ts(0)
        if self.wait_tile: self.wait_tile(self, 0)
        a(f"s_lshl_b32 s{T}, s{self.sTILE}, 17\ns_lshl_b32 s{T+1}, s{w}, 15\ns_add_u32 s{T}, s{T}, s{T+1}")
        sadd64(a, self.sOX, S_WS, T, OFF_OXF)
        a(f"s_lshl_b32 s{T}, s{self.sTILE}, 14\ns_lshl_b32 s{T+1}, s{w}, 12\ns_add_u32 s{T+1}, s{T}, s{T+1}")
        sadd64(a, self.sOA, S_WS, T+1, OFF_OAF)
        sadd64(a, self.sXG, S_AX, T)
        sadd64(a, self.sOUTP, S_OUT, T)
        for kk in range(4):
            a(f"global_load_dwordx4 v[{OF+4*kk}:{OF+4*kk+3}], v{VXL}, s[{self.sXG}:{self.sXG+1}] offset:{kk*64}")
        for kk in range(4):
            a(f"global_load_dwordx4 v[{OF+16+4*kk}:{OF+16+4*kk+3}], v{L16}, s[{self.sOA}:{self.sOA+1}] offset:{kk*1024}{self.ld}")
        if self.wait_tile: self.wait_tile(self, 1)
        else: a("s_waitcnt vmcnt(0)")
        self.ts(1)
        for ks in range(32):
            if ks and ks % 4 == 0: sadd64(a, self.sOX, self.sOX, imm=4096)
            a(f"global_load_dwordx4 v[{OF+32+4*ks}:{OF+32+4*ks+3}], v{L16}, s[{self.sOX}:{self.sOX+1}] offset:{(ks%4)*1024}{self.ld}")
        AB, AA, AG = ACC, ACC + 8, ACC + 16
        a("s_waitcnt vmcnt(32)")
        for kk in range(4):
            a(f"v_mfma_f32_16x16x32_bf16 v[{AG}:{AG+3}], v[{GW+4*kk}:{GW+4*kk+3}], v[{OF+4*kk}:{OF+4*kk+3}], " + ("0" if kk == 0 else f"v[{AG}:{AG+3}]"))
        for kk in range(4):
            for t in range(2):
                r = WA + (kk*2 + t)*4
                a(f"v_mfma_f32_16x16x32_bf16 v[{AA+4*t}:{AA+4*t+3}], v[{r}:{r+3}], v[{OF+16+4*kk}:{OF+16+4*kk+3}], " + ("0" if kk == 0 else f"v[{AA+4*t}:{AA+4*t+3}]"))
        for ks in range(32):
            a(f"s_waitcnt vmcnt({31-ks})")
            for t in range(2):
                r = (ks*2 + t)*4
                a(f"v_mfma_f32_16x16x32_bf16 v[{AB+4*t}:{AB+4*t+3}], a[{r}:{r+3}], v[{OF+32+4*ks}:{OF+32+4*ks+3}], " + ("0" if ks == 0 else f"v[{AB+4*t}:{AB+4*t+3}]"))
        self.ts(2)
        a(f"v_add_u32 v{T0}, s{self.sBUF}, v{VRW}")
        for q in range(5):
            a(f"ds_write_b128 v{T0}, v[{ACC+4*q}:{ACC+4*q+3}] offset:{q*1024}")
        a("s_waitcnt lgkmcnt(0)\ns_barrier")
        a(f"s_and_b32 s{T}, s{self.sCNT}, 3\ns_cmp_lg_u32 s{T}, s{w}\ns_cbranch_scc1 {lskip}")
        a(f"v_add_u32 v{T0}, s{self.sBUF}, v{L16}")
        for ww in range(4):
            for q in range(5):
                a(f"ds_read_b128 v[{OF+20*ww+4*q}:{OF+20*ww+4*q+3}], v{T0} offset:{ww*5120 + q*1024}")
        a("s_waitcnt lgkmcnt(0)")
        for i in range(17):
            a(f"v_add_f32 v{OF+i}, v{OF+i}, v{OF+20+i}\nv_add_f32 v{OF+40+i}, v{OF+40+i}, v{OF+60+i}\nv_add_f32 v{OF+i}, v{OF+i}, v{OF+40+i}")
        Gt = OF + 16
        a(f"v_mul_f32 v{Gt}, {f32bits(-math.log2(math.e))}, v{Gt}\nv_exp_f32 v{Gt}, v{Gt}\nv_add_f32 v{Gt}, 1.0, v{Gt}\nv_rcp_f32 v{Gt}, v{Gt}")
        for i in range(8):
            a(f"v_sub_f32 v{OF+8+i}, v{OF+8+i}, v{OF+i}\nv_fma_f32 v{OF+i}, v{Gt}, v{OF+8+i}, v{OF+i}")
        for i in range(4): a(f"v_cvt_pk_bf16_f32 v{OF+20+i}, v{OF+2*i}, v{OF+2*i+1}")
        a(f"global_store_dwordx4 v{VOUT}, v[{OF+20}:{OF+23}], s[{self.sOUTP}:{self.sOUTP+1}]")
        a("s_nop 1")
        a.label(lskip)
        a(f"s_xor_b32 s{self.sBUF}, s{self.sBUF}, 20480\ns_add_u32 s{self.sCNT}, s{self.sCNT}, 1")
        a(f"s_add_u32 s{self.sTILE}, s{self.sTILE}, {self.R}\ns_cmp_lt_u32 s{self.sTILE}, 128\ns_cbranch_scc1 {loop}")
        a("s_waitcnt vmcnt(0)")
```

```python
import sys
from asmlib import *
from rec import *
from rec4 import Rec4 as Rec2
from gemm1 import Gemm1
from attn import *
NAME = "gated_mix__sliding_block__memory_aug_recurrent_mem_tr__prompt_kernel"
S_WI = 8
SPIN = 10

def wait_init(a, va, vb, st):
    l, ld = a.newlabel('Lwi'), a.newlabel('Lwi')
    a(f"v_mov_b32 v{va}, {DBG_INIT}\ns_mov_b32 s{st+1}, 0")
    a.label(l)
    a(f"global_load_dword v{vb}, v{va}, s[{S_DBG}:{S_DBG+1}] sc1")
    a(f"s_add_u32 s{st+1}, s{st+1}, 1\ns_cmp_gt_u32 s{st+1}, 0x100000\ns_cbranch_scc1 {ld}")
    a(f"s_waitcnt vmcnt(0)\nv_readfirstlane_b32 s{st}, v{vb}\ns_cmp_lt_u32 s{st}, 8\ns_cbranch_scc1 {l}")
    a.label(ld)

def wait_flag(a, va, vb, s_idx, base, mask, target, st, sleep=4, s_sub=None):
    l, ld = a.newlabel('Lwf'), a.newlabel('Lwf')
    a(f"s_lshl_b32 s{st}, s{s_idx}, 7\ns_add_u32 s{st}, s{st}, {base}")
    if s_sub is not None:
        a(f"s_lshl_b32 s{SPIN}, s{s_sub}, 2\ns_add_u32 s{st}, s{st}, s{SPIN}")
    a(f"v_mov_b32 v{va}, s{st}")
    a.label(l)
    a(f"global_load_dword v{vb}, v{va}, s[{S_WS}:{S_WS+1}] sc1")
    a(f"s_add_u32 s{SPIN}, s{SPIN}, 1\ns_cmp_gt_u32 s{SPIN}, 0x80000\ns_cbranch_scc1 {ld}")
    a(f"s_waitcnt vmcnt(0)\nv_readfirstlane_b32 s{st}, v{vb}\ns_and_b32 s{st}, s{st}, {mask}\ns_cmp_eq_u32 s{st}, {target}\ns_cbranch_scc1 {ld}")
    a(f"s_sleep {sleep}\ns_branch {l}")
    a.label(ld)

def touch_pages(a, va, vb):
    a(f"v_min_u32 v{va}, 46, v0\nv_lshlrev_b32 v{va}, 21, v{va}\nv_add_u32 v{va}, 0x1fff00, v{va}")
    a(f"global_load_dword v{vb}, v{va}, s[{S_WS}:{S_WS+1}] sc1")

def signal(a, va, vb, s_idx, base, st):
    a(f"s_lshl_b32 s{st}, s{s_idx}, 7\ns_add_u32 s{st}, s{st}, {base}\nv_mov_b32 v{va}, s{st}\nv_mov_b32 v{vb}, 1")
    a("s_mov_b64 exec, 1")
    a(f"global_atomic_add v{va}, v{vb}, s[{S_WS}:{S_WS+1}]")
    a("s_mov_b64 exec, -1")

def build(stamps=False, name=NAME, noworkers=False):
    a = Asm()
    RT_ON[0] = stamps
    a.raw("; @launch grid=(256,1,1) block=(256,1,1) lds=163840")
    a.raw('.amdgcn_target "amdgcn-amd-amdhsa--gfx950"\n.text')
    a.raw(f".globl {name}\n.p2align 8\n.type {name},@function\n{name}:")
    a("s_cmp_ge_u32 s2, 256\ns_cbranch_scc1 L_end")
    prologue_common(a)
    a("s_and_b32 s6, s2, 7\ns_cmp_lg_u32 s6, 0\ns_cbranch_scc1 L_worker")
    a(f"s_lshr_b32 s{S_RANK}, s2, 3")
    Rec2(a, stamps=stamps, flags=not noworkers, wait_init=wait_init).body(DBG_BAR)
    a("s_endpgm")
    a.label("L_worker")
    if noworkers: a("s_endpgm")
    a(f"s_lshr_b32 s{S_WI}, s2, 3\ns_sub_u32 s12, s6, 1")
    a(f"s_lshl_b32 s6, s12, 3\ns_lshr_b32 s7, s{S_WI}, 2\ns_add_u32 s6, s6, s7\ns_and_b32 s7, s{S_WI}, 3")
    a("s_cmp_lt_u32 s6, 54\ns_cbranch_scc1 L_gemm1")
    a(f"s_sub_u32 s6, s{S_WI}, 24\ns_lshl_b32 s6, s6, 2\ns_add_u32 s6, s6, s{S_WAVE}\ns_mul_i32 s6, s6, 10240\ns_add_u32 s6, s6, {OFF_FLAG}\nv_lshlrev_b32 v1, 4, v0\nv_add_u32 v1, s6, v1")
    for i in range(4): a(f"v_mov_b32 v{4+i}, 0")
    for i in range(10):
        if i and i % 4 == 0: a("v_add_u32 v1, 4096, v1")
        a(f"global_store_dwordx4 v1, v[4:7], s[{S_WS}:{S_WS+1}] offset:{(i%4)*1024} sc1")
    a("s_waitcnt vmcnt(0)\ns_barrier")
    a(f"s_cmp_lg_u32 s{S_WAVE}, 0\ns_cbranch_scc1 L_noinit")
    a(f"v_mov_b32 v1, {DBG_INIT}\nv_mov_b32 v2, 1\ns_mov_b64 exec, 1")
    a(f"global_atomic_add v1, v2, s[{S_DBG}:{S_DBG+1}]\ns_mov_b64 exec, -1")
    a.label("L_noinit")
    wait_init(a, 1, 2, 44)
    a("s_branch L_phase2")
    a.label("L_gemm1")
    rtstamp(a, 0)
    Gemm1(a, st_flavor=" sc1", flags=True, wait_init=wait_init).body()
    a.label("L_phase2")
    a(f"s_mov_b32 s{SPIN}, 0")
    rtstamp(a, 2)
    a(f"s_cmp_lt_u32 s{S_WI}, 16\ns_cbranch_scc1 L_stage2")
    a(f"s_lshl_b32 s9, s12, 4\ns_add_u32 s9, s9, s{S_WI}\ns_sub_u32 s9, s9, 16\ns_lshl_b32 s9, s9, 2\ns_add_u32 s9, s9, s{S_WAVE}")
    aa = AttnA(a, " sc1", " sc1"); aa.setup()
    a.label("L_aa_loop")
    a("s_and_b32 s6, s9, 15\ns_lshr_b32 s7, s9, 4")
    l, ld = a.newlabel('Lwa'), a.newlabel('Lwa')
    a(f"v_add_u32 v8, s7, v0\nv_subrev_u32 v8, 8, v8\nv_max_i32 v8, 0, v8\nv_lshlrev_b32 v8, 7, v8\nv_add_u32 v8, {OFF_FA1}, v8")
    a("s_mov_b64 exec, 0x1ff")
    a.label(l)
    a(f"global_load_dword v9, v8, s[{S_WS}:{S_WS+1}] sc1")
    a(f"s_add_u32 s{SPIN}, s{SPIN}, 1\ns_cmp_gt_u32 s{SPIN}, 0x80000\ns_cbranch_scc1 {ld}")
    a(f"s_waitcnt vmcnt(0)\nv_cmp_ne_u32 vcc, 6, v9\ns_cbranch_vccz {ld}\ns_sleep 8\ns_branch {l}")
    a.label(ld)
    a("s_mov_b64 exec, -1")
    aa.task()
    a("s_waitcnt vmcnt(0)")
    signal(a, 8, 9, 7, OFF_FAA, 76)
    a("s_add_u32 s9, s9, 448\ns_cmp_lt_u32 s9, 1024\ns_cbranch_scc1 L_aa_loop")
    rtstamp(a, 3)
    a(f"s_cmp_lt_u32 s{S_WI}, 24\ns_cbranch_scc1 L_xattn")
    a("s_endpgm")
    a.label("L_xattn")
    a(f"s_sub_u32 s6, s{S_WI}, 16\ns_lshl_b32 s6, s6, 2\ns_add_u32 s6, s6, s{S_WAVE}\ns_mov_b32 s7, s12")
    touch_pages(a, 252, 253)
    xa = AttnX(a, " sc1", " sc1"); xa.setup()
    a.label("L_xa_loop")
    wait_flag(a, 252, 253, 7, OFF_FKV, 0xffff, 32, 76)
    wait_flag(a, 252, 253, 7, OFF_FQ, 0xffff, 16, 76)
    xa.load_x()
    xa.compute_pre()
    l, ld = a.newlabel('Lwm'), a.newlabel('Lwm')
    a(f"s_lshl_b32 s76, s7, 5\ns_add_u32 s76, s76, s6\ns_lshl_b32 s76, s76, 7\ns_add_u32 s76, s76, {OFF_FM}\nv_lshlrev_b32 v252, 2, v0\nv_add_u32 v252, s76, v252")
    a("s_mov_b64 exec, 15")
    a.label(l)
    a(f"global_load_dword v253, v252, s[{S_WS}:{S_WS+1}] sc1")
    a(f"s_add_u32 s{SPIN}, s{SPIN}, 1\ns_cmp_gt_u32 s{SPIN}, 0x80000\ns_cbranch_scc1 {ld}")
    a(f"s_waitcnt vmcnt(0)\nv_cmp_ne_u32 vcc, 1, v253\ns_cbranch_vccz {ld}\ns_sleep 2\ns_branch {l}")
    a.label(ld)
    a("s_mov_b64 exec, -1")
    rtstamp(a, 4, 252, 253)
    xa.load_m()
    rtstamp(a, 5, 252, 253)
    xa.compute()
    rtstamp(a, 6, 252, 253)
    a("s_waitcnt vmcnt(0)")
    rtstamp(a, 7, 252, 253)
    a(f"s_lshl_b32 s76, s7, 5\ns_add_u32 s76, s76, s6\ns_lshl_b32 s76, s76, 2\ns_add_u32 s76, s76, {OFF_FX}\nv_mov_b32 v252, s76\nv_mov_b32 v253, 1\ns_mov_b64 exec, 1")
    a(f"global_store_dword v252, v253, s[{S_WS}:{S_WS+1}] sc1\ns_mov_b64 exec, -1")
    a("s_add_u32 s7, s7, 7\ns_cmp_lt_u32 s7, 64\ns_cbranch_scc1 L_xa_loop")
    rtstamp(a, 3)
    a("s_endpgm")
    a.label("L_stage2")
    a("s_barrier")
    a(f"s_mov_b32 s6, s{S_WI}\ns_mov_b32 s7, s12")
    touch_pages(a, 250, 251)
    def wt(s2, phase):
        a(f"s_lshr_b32 s11, s{s2.sTILE}, 1")
        if phase == 0: wait_flag(a, 1, 2, 11, OFF_FAA, 0xffff, 16, 44)
        else:
            l, ld = a.newlabel('Lwx'), a.newlabel('Lwx')
            a(f"s_cmp_lg_u32 s{S_WAVE}, 0\ns_cbranch_scc1 {ld}")
            a(f"s_lshl_b32 s44, s11, 7\ns_add_u32 s44, s44, {OFF_FX}\nv_and_b32 v1, 31, v0\nv_lshlrev_b32 v1, 2, v1\nv_add_u32 v1, s44, v1")
            a.label(l)
            a(f"global_load_dword v2, v1, s[{S_WS}:{S_WS+1}] sc1")
            a(f"s_add_u32 s{SPIN}, s{SPIN}, 1\ns_cmp_gt_u32 s{SPIN}, 0x80000\ns_cbranch_scc1 {ld}")
            a(f"s_waitcnt vmcnt(0)\nv_cmp_ne_u32 vcc, 1, v2\ns_cbranch_vccz {ld}\ns_sleep 2\ns_branch {l}")
            a.label(ld)
            a("s_barrier")
    Stage2(a, 7, wait_tile=wt, ld_flavor=" sc1").body()
    rtstamp(a, 3)
    a.label("L_end")
    a("s_endpgm")
    a.raw('.section .rodata,"a"\n.p2align 6')
    a.raw(f'.amdhsa_kernel {name}')
    a.raw("  .amdhsa_next_free_vgpr 512\n  .amdhsa_next_free_sgpr 102\n  .amdhsa_accum_offset 256\n  .amdhsa_group_segment_fixed_size 0\n  .amdhsa_kernarg_size 112")
    a.raw("  .amdhsa_user_sgpr_count 2\n  .amdhsa_user_sgpr_kernarg_segment_ptr 1\n  .amdhsa_system_sgpr_workgroup_id_x 1\n.end_amdhsa_kernel")
    return a.text()
if __name__ == "__main__":
    open("../merged.s", "w").write(build())
    open("../merged_st.s", "w").write(build(stamps=True))
    for nm, st in (("A", ['pollA', 'b1', 'g0', 'g11', 'g23', 'g31', 'qk_end', 'b2pre']),
                   ("B", ['qk_end', 'b2pre', 'b2', 'v_end', 's_end', 'sm_end', 'b3pre', 'b3v']),
                   ("C", ['b3v', 'b3', 'oex', 'ost', 'pollB', 'end', 'zz1', 'zzz'])):
        Rec2.STAMPS = st
        open(f"../merged_st{nm}.s", "w").write(build(stamps=True))
    Rec2.STAMPS = ['pre', 'pollA', 'qk_end', 'v_end', 'sm_end', 'oex', 'ost', 'pollB']
    Rec2.PERSTEP = True
    open("../merged_stP.s", "w").write(build(stamps=True))
    Rec2.PERSTEP = False
    open("../merged_stN.s", "w").write(build(stamps=True, noworkers=True))
```

```python
from asmlib import *
from layout import *
from rec import (S_MEM0, S_WQ, S_WK, S_WV, S_WO, S_DBG, S_WS, S_WAVE, S_RANK, S_LOCAL, sadd64, rtstamp,
                 L_MEMX, L_KX, L_QK, L_O, L_W)
import math, struct

L16, DUP, MX0, MX1, MX2, MX3, IDX, QKW, QKR, OW, PST, MST, WL, LANE, T0, T1 = range(16)
WL2 = MX1
FAD, FLG = MX2, MX3
PKV = 16
SEL, CM = 20, 24
QA, KA, VA = 28, 32, 36
MA, WB, XF, VX, WREG = 40, 72, 96, 112, 128

class Rec4:
    PERSTEP = False
    PA0 = ['s_waitcnt vmcnt(0)']
    PA1 = ['s_sleep 2']
    PB0 = ['s_waitcnt vmcnt(1)']
    PB1 = ['s_sleep 2']
    GAPA = 128
    GAPB = 128
    GAPB0 = 256
    GAPA0 = 64
    STAMPS = ['pre', 'pollA', 'qk_end', 'v_end', 'sm_end', 'oex', 'ost', 'pollB']
    def __init__(self, a, stamps=False, flags=False, wait_init=None):
        self.a = a; self.stamps = stamps; self.flags = flags; self.wait_init = wait_init
        self.flavor = ' sc1'
        self.sMEM = [44, 46]; self.sPART = [48, 50]; self.sPART2 = [52, 54]; self.sINB = [16, 18]
        self.sKX, self.sVX, self.sKVM = 56, 58, 60
        self.sONES = 62
        self.sT = 64
        self.sSTEP, self.sC = 68, 69
        self.sN4 = 70
        self.sW0 = 72
        self.sRDY = 74
        self.sUPTO = 76
        self.sSPIN = 77
        self.sKXL = 78
        self.sFMA = 79
        self.sC2 = 80
        self.sPC = 82
        self.sST = 84
        self.lds_blocks = [('k', 0), ('k', 1), ('k', 2), ('k', 3), ('q', 5), ('k', 6), ('v', 5), ('o', 0)]
        allb = [(m, s) for m in 'qkv' for s in range(8)] + [('o', i) for i in range(8)]
        self.regblocks = [b for b in allb if b not in self.lds_blocks]
        assert len(self.regblocks) == 24
        self.loc = {}
        for i, b in enumerate(self.regblocks):
            self.loc[b] = ('a', 16*i) if i < 16 else ('v', WREG + 16*(i-16))
        for i, b in enumerate(self.lds_blocks):
            self.loc[b] = ('l', (i + 1) % 8)
        self.ool = []
        self.early = True

    def delay(self, cyc):
        n = cyc // 4
        while n > 0:
            k = min(n, 16); self.a(f"s_nop {k-1}"); n -= k

    def nstamp(self, name):
        if self.stamps and name in self.STAMPS:
            i = self.STAMPS.index(name)
            self.a(f"s_memtime s[{self.sST+2*i}:{self.sST+2*i+1}]")

    def setup(self):
        a = self.a; h, w, T = S_RANK, S_WAVE, self.sT
        a(f"v_mov_b32 v{LANE}, v0")
        l = LANE
        a(f"v_lshlrev_b32 v{L16}, 4, v{l}")
        a(f"v_lshrrev_b32 v{T0}, 4, v{l}\nv_lshlrev_b32 v{DUP}, 7, v{T0}\nv_and_b32 v{T0}, 7, v{l}\nv_lshl_add_u32 v{DUP}, v{T0}, 4, v{DUP}")
        a(f"s_lshl_b32 s{T}, s{w}, 11\nv_add_u32 v{MX0}, s{T}, v{L16}")
        a(f"v_and_b32 v{T0}, 8, v{l}\nv_cmp_ne_u32 vcc, 0, v{T0}")
        a(f"v_mov_b32 v{IDX}, 0x4444\nv_mov_b32 v{T1}, 0xeeee\nv_cndmask_b32 v{IDX}, v{IDX}, v{T1}, vcc")
        a(f"v_and_b32 v{T0}, 15, v{l}\nv_lshrrev_b32 v{T1}, 5, v{l}\nv_lshl_add_u32 v{T0}, v{T1}, 4, v{T0}")
        a(f"v_lshlrev_b32 v{T0}, 5, v{T0}\nv_bfe_u32 v{T1}, v{l}, 4, 1\nv_lshl_add_u32 v{T0}, v{T1}, 4, v{T0}")
        a(f"s_lshl_b32 s{T}, s{w}, 10\ns_add_u32 s{T}, s{T}, {L_QK}\nv_add_u32 v{QKW}, s{T}, v{T0}")
        a(f"v_lshrrev_b32 v{T0}, 2, v{l}\nv_lshlrev_b32 v{QKR}, 5, v{T0}\nv_and_b32 v{T0}, 1, v{l}\nv_lshl_add_u32 v{QKR}, v{T0}, 4, v{QKR}")
        a(f"v_bfe_u32 v{T0}, v{l}, 1, 1\nv_xor_b32 v{T0}, 1, v{T0}\nv_lshl_add_u32 v{QKR}, v{T0}, 3, v{QKR}")
        a(f"s_lshl_b32 s{T}, s{w}, 9\ns_add_u32 s{T}, s{T}, {L_O}\nv_add_u32 v{OW}, s{T}, v{DUP}")
        a(f"v_lshrrev_b32 v{T0}, 5, v{l}\nv_lshlrev_b32 v{PST}, 14, v{T0}\nv_bfe_u32 v{T0}, v{l}, 2, 2\nv_lshl_add_u32 v{PST}, v{T0}, 12, v{PST}")
        a(f"v_bfe_u32 v{T0}, v{l}, 4, 1\nv_lshl_add_u32 v{PST}, v{T0}, 11, v{PST}\nv_and_b32 v{T0}, 3, v{l}\nv_lshl_add_u32 v{PST}, v{T0}, 4, v{PST}")
        a(f"s_lshl_b32 s{T}, s{w}, 16\ns_lshl_b32 s{T+1}, s{h}, 6\ns_add_u32 s{T}, s{T}, s{T+1}\nv_add_u32 v{PST}, s{T}, v{PST}")
        a(f"s_lshl_b32 s{T+2}, s{h}, 2\ns_add_u32 s{T+2}, s{T+2}, s{w}")
        a(f"s_lshl_b32 s{T}, s{T+2}, 11")
        for p in range(2): sadd64(a, self.sINB[p], S_WS, T, OFF_PART + p*262144)
        a(f"v_bfe_u32 v{T0}, v{l}, 4, 1\nv_lshlrev_b32 v{T0}, 5, v{T0}\nv_and_b32 v{T1}, 7, v{l}\nv_lshl_add_u32 v{T0}, v{T1}, 2, v{T0}")
        a(f"s_lshl_b32 s{T}, s{T+2}, 6\nv_add_u32 v{MST}, s{T}, v{T0}")
        a(f"s_lshl_b32 s{T}, s{w}, 12\ns_add_u32 s{T}, s{T}, {L_W}\nv_add_u32 v{WL}, s{T}, v{L16}\nv_add_u32 v{WL2}, 65536, v{WL}")
        for p in range(2):
            sadd64(a, self.sMEM[p], S_WS, imm=OFF_MEM + p*8192)
            sadd64(a, self.sPART[p], S_WS, imm=OFF_PART + p*262144)
            sadd64(a, self.sPART2[p], S_WS, imm=OFF_PART + p*262144 + 32768)
        a(f"s_lshl_b32 s{T}, s{h}, 19\ns_lshl_b32 s{T+1}, s{w}, 11\ns_add_u32 s{T}, s{T}, s{T+1}")
        sadd64(a, self.sKX, S_WS, T, OFF_KXF); sadd64(a, self.sVX, S_WS, T, OFF_VXF)
        a(f"s_mul_i32 s{T}, s{h}, {65*4096}\ns_lshl_b32 s{T+1}, s{w}, 10\ns_add_u32 s{T}, s{T}, s{T+1}")
        sadd64(a, self.sKVM, S_WS, T, OFF_KVM + 4096)
        a(f"v_lshlrev_b32 v{FAD}, 7, v{l}\nv_add_u32 v{FAD}, {OFF_FKV}, v{FAD}")
        a(f"s_lshl_b32 s{self.sKXL}, s{w}, 11\ns_add_u32 s{self.sKXL}, s{self.sKXL}, {L_KX}")
        c = (128 ** -0.5) * math.log2(math.e)
        a(f"s_mov_b32 s{self.sC}, 0x{struct.unpack('<I', struct.pack('<f', c))[0]:08x}")
        a(f"s_mov_b32 s{self.sC2}, s{self.sC}\ns_mov_b32 s{self.sC2+1}, s{self.sC}")
        a(f"s_mov_b32 s{self.sONES}, 0x3f803f80\ns_mov_b32 s{self.sONES+1}, 0x3f803f80")
        a(f"v_and_b32 v{T0}, 4, v{l}\nv_cmp_ne_u32 s[{self.sN4}:{self.sN4+1}], 0, v{T0}")
        a(f"s_cmp_eq_u32 s{w}, 0\ns_cselect_b32 s{self.sW0}, 1, 0\ns_mov_b32 s{self.sW0+1}, 0")
        a(f"s_lshl_b32 s{self.sFMA}, s{h}, 7\ns_lshl_b32 s{T}, s{w}, 2\ns_add_u32 s{self.sFMA}, s{self.sFMA}, s{T}\ns_add_u32 s{self.sFMA}, s{self.sFMA}, {OFF_FM - 4096}")
        a(f"v_and_b32 v{T0}, 1, v{l}\nv_lshlrev_b32 v{T0}, 4, v{T0}\nv_mov_b32 v{T1}, 0x3f80\nv_lshlrev_b32 v{T1}, v{T0}, v{T1}\nv_and_b32 v{T0}, 14, v{l}")
        for r in range(4):
            a(f"v_cmp_eq_u32 vcc, {2*r}, v{T0}\nv_cndmask_b32 v{SEL+r}, 0, v{T1}, vcc")
        a(f"v_cmp_le_u32 vcc, 32, v{l}\nv_mov_b32 v{T0}, 0xf149f2ca")
        for r in range(4): a(f"v_cndmask_b32 v{CM+r}, 0, v{T0}, vcc")
        for r in range(4): a(f"v_mov_b32 v{PKV+r}, 0")

    def lslot_addr(self, slot, off):
        return (WL, slot*16384 + off) if slot < 4 else (WL2, (slot-4)*16384 + off)

    def load_weights(self):
        a = self.a; h, w, T, l = S_RANK, S_WAVE, self.sT, LANE
        VQ, VTQ, VTQ2, VTO, VTO2 = MA+8, MA+9, MA+10, MA+11, MA+12
        TMP, OTMP = WB, XF
        a(f"v_lshrrev_b32 v{T0}, 4, v{l}\nv_and_b32 v{T1}, 15, v{l}\nv_lshlrev_b32 v{T1}, 4, v{T1}\nv_lshl_add_u32 v{VQ}, v{T0}, 13, v{T1}")
        a(f"s_lshl_b32 s{T}, s{h}, 8\ns_lshl_b32 s{T+1}, s{w}, 17\ns_add_u32 s{T}, s{T}, s{T+1}\nv_add_u32 v{VQ}, s{T}, v{VQ}")
        a(f"v_bfe_u32 v{T0}, v{l}, 3, 1\nv_lshlrev_b32 v{VTQ}, 5, v{T0}\nv_and_b32 v{T0}, 3, v{l}\nv_lshl_add_u32 v{VTQ}, v{T0}, 3, v{VTQ}")
        a(f"s_lshl_b32 s{T}, s{w}, 8\ns_add_u32 s{T}, s{T}, {L_W}\nv_add_u32 v{VTO}, s{T}, v{VTQ}")
        a(f"s_lshl_b32 s{T}, s{w}, 6\ns_add_u32 s{T}, s{T}, {L_W}\nv_add_u32 v{VTQ}, s{T}, v{VTQ}")
        a(f"v_bfe_u32 v{T0}, v{l}, 2, 1\nv_lshl_add_u32 v{VTQ}, v{T0}, 13, v{VTQ}\nv_lshl_add_u32 v{VTO}, v{T0}, 10, v{VTO}")
        a(f"v_bfe_u32 v{T0}, v{l}, 5, 1\nv_lshl_add_u32 v{VTQ}, v{T0}, 10, v{VTQ}\nv_lshl_add_u32 v{VTO}, v{T0}, 12, v{VTO}")
        a(f"v_bfe_u32 v{T0}, v{l}, 4, 1\nv_lshl_add_u32 v{VTQ}, v{T0}, 9, v{VTQ}\nv_lshl_add_u32 v{VTO}, v{T0}, 14, v{VTO}")
        a(f"v_add_u32 v{VTQ2}, 65536, v{VTQ}\nv_add_u32 v{VTO2}, 65536, v{VTO}")
        a(f"s_lshl_b32 s{T+3}, s{w}, 12\ns_add_u32 s{T+3}, s{T+3}, {L_W}")
        a(f"s_lshl_b32 s{T+2}, s{h}, 17\ns_lshl_b32 s{T}, s{w}, 12\ns_add_u32 s{T+2}, s{T+2}, s{T}")
        items = [('O', i) for i in range(8)] + [b for b in self.regblocks if b[0] != 'o'] + [b for b in self.lds_blocks if b[0] != 'o']
        assert len(items) == 32
        def issue(n):
            mat, idx = items[n]; slot = n % 8
            if mat == 'O':
                sadd64(a, T, S_WO, T+2, idx*16384)
                a(f"s_add_u32 m0, s{T+3}, {slot*16384}\ns_nop 0")
                for i in range(4):
                    a(f"global_load_lds_dwordx4 v{L16}, s[{T}:{T+1}] offset:{i*1024}")
            else:
                base = {'q': S_WQ, 'k': S_WK, 'v': S_WV}[mat]
                sadd64(a, T, base, imm=idx << 19)
                for i in range(4):
                    a(f"s_add_u32 m0, s{T+3}, {slot*16384 + i*1024}")
                    if i: sadd64(a, T, T, imm=32768)
                    else: a("s_nop 0")
                    a(f"global_load_lds_dwordx4 v{VQ}, s[{T}:{T+1}]")
        def consume(n):
            mat, idx = items[n]; slot = n % 8
            if mat == 'O':
                if idx % 2 == 0: return False
                ko = idx // 2; s0 = slot - 1
                va, sb = (VTO, s0*16384) if s0 < 4 else (VTO2, (s0-4)*16384)
                for j in range(4):
                    k, base = self.loc[('o', (ko // 2)*4 + j)]
                    if k == 'l': k, base = 'v', OTMP
                    for rho in range(4):
                        r = base + 8*(ko % 2) + 2*rho
                        a(f"ds_read_b64_tr_b16 {k}[{r}:{r+1}], v{va} offset:{sb + (8*(rho >> 1) + 2*(rho & 1))*1024 + j*64}")
                a("s_waitcnt lgkmcnt(0)")
                return True
            k, base = self.loc[(mat, idx)]
            isl = k == 'l'
            if isl:
                assert base == slot, (base, slot)
                k, base = 'v', TMP
            va, sb = (VTQ, slot*16384) if slot < 4 else (VTQ2, (slot-4)*16384)
            for b in range(2):
                for rho in range(4):
                    r = base + 8*b + 2*rho
                    a(f"ds_read_b64_tr_b16 {k}[{r}:{r+1}], v{va} offset:{sb + (16*b + 8*(rho >> 1) + (rho & 1))*256}")
            a("s_waitcnt lgkmcnt(0)")
            if isl:
                a("s_barrier")
                for q in range(4):
                    r_, o_ = self.lslot_addr(slot, q*1024)
                    a(f"ds_write_b128 v{r_}, v[{TMP+4*q}:{TMP+4*q+3}] offset:{o_}")
                a("s_waitcnt lgkmcnt(0)")
            return True
        for n in range(8): issue(n)
        issued = 8; consumed = 0
        for n in range(32):
            a(f"s_waitcnt vmcnt({4*(issued - n - 1) + (11 if n > 28 else 0)})")
            a("s_barrier")
            while issued < 32 and issued - 8 < consumed:
                issue(issued); issued += 1
            if n == 2: self.comm_init2()
            if n == 12: self.group_arrive(self.dbg_off)
            if consume(n): consumed = n + 1
            if n == 8:
                a(f"s_getpc_b64 s[{self.sPC}:{self.sPC+1}]")
                a.label("Lpcref")
                a(f"s_add_u32 s{self.sPC}, s{self.sPC}, Lrec_local-Lpcref\ns_addc_u32 s{self.sPC+1}, s{self.sPC+1}, 0")
                a(f"v_lshlrev_b32 v{T0}, 3, v{L16}")
                a(f"global_load_dword v{MA+16}, v{T0}, s[{self.sPC}:{self.sPC+1}]")
                a(f"v_add_u32 v{T0}, 8192, v{T0}")
                a(f"global_load_dword v{MA+16}, v{T0}, s[{self.sPC}:{self.sPC+1}]")
            if n == 10 and self.flags:
                a(f"v_mov_b32 v{T0}, {DBG_INIT}")
                a(f"global_load_dword v{MA+2}, v{T0}, s[{S_DBG}:{S_DBG+1}] sc1")
            if n == 19:
                if self.flags:
                    ok = a.newlabel('Lini')
                    a(f"v_readfirstlane_b32 s{T}, v{MA+2}\ns_cmp_ge_u32 s{T}, 8\ns_cbranch_scc1 {ok}")
                    self.wait_init(a, T0, T1, T)
                    a.label(ok)
                    a(f"global_load_dword v{FLG}, v{FAD}, s[{S_WS}:{S_WS+1}] sc1")
                a(f"v_mov_b32 v{T0}, {self.dbg_off}")
                a(f"global_load_dwordx2 v[{MA}:{MA+1}], v{T0}, s[{S_DBG}:{S_DBG+1}] sc1")
            if n == 28:
                if self.flags:
                    a(f"v_cmp_le_u32 s[{self.sRDY}:{self.sRDY+1}], 32, v{FLG}")
                    a(f"s_ff0_i32_b64 s{self.sUPTO}, s[{self.sRDY}:{self.sRDY+1}]")
                    self.ready_check(0)
                for g in self.prefetch_groups(0):
                    for x in g: a(x)
                ok = a.newlabel('Lgrp')
                a(f"v_readfirstlane_b32 s{T}, v{MA}\ns_cmp_ge_u32 s{T}, 32\ns_cbranch_scc1 {ok}")
                self.group_wait(self.dbg_off)
                a.label(ok)
                a(f"v_readfirstlane_b32 s{T}, v{MA+1}\ns_bcnt1_i32_b32 s{S_LOCAL}, s{T}")
                if self.flags:
                    a(f"global_load_dword v{FLG}, v{FAD}, s[{S_WS}:{S_WS+1}] sc1")
                else:
                    a(f"global_load_dword v{FLG}, v{L16}, s[{S_WS}:{S_WS+1}] sc1")
                for p in range(2):
                    a(f"global_load_dwordx4 v[{MA+16}:{MA+19}], v{L16}, s[{self.sINB[p]}:{self.sINB[p]+1}] sc1")
                    a(f"global_load_dwordx4 v[{MA+16}:{MA+19}], v{L16}, s[{self.sINB[p]}:{self.sINB[p]+1}] offset:1024 sc1")
                    a(f"global_load_dword v{MA+16}, v{MST}, s[{self.sMEM[p]}:{self.sMEM[p]+1}] sc1")
        for q in range(4):
            r_, o_ = self.lslot_addr(self.loc[('o', 0)][1], q*1024)
            a(f"ds_write_b128 v{r_}, v[{OTMP+4*q}:{OTMP+4*q+3}] offset:{o_}")
        a("s_waitcnt lgkmcnt(0)")

    def comm_init(self):
        a = self.a; T, l, R = self.sT, LANE, MA
        for i in range(4): a(f"v_mov_b32 v{R+i}, -1")
        for p in range(2):
            for i in range(2):
                a(f"global_store_dwordx4 v{L16}, v[{R}:{R+3}], s[{self.sINB[p]}:{self.sINB[p]+1}] offset:{i*1024} sc1")
        a(f"s_lshl_b32 s{T+2}, s{S_RANK}, 2\ns_add_u32 s{T+2}, s{T+2}, s{S_WAVE}")
        a(f"s_lshr_b32 s{T}, s{T+2}, 4\ns_lshl_b32 s{T}, s{T}, 7")
        a(f"s_bfe_u32 s{T+1}, s{T+2}, 0x10003\ns_lshl_b32 s{T+1}, s{T+1}, 5\ns_add_u32 s{T}, s{T}, s{T+1}")
        a(f"s_bfe_u32 s{T+1}, s{T+2}, 0x20001\ns_lshl_b32 s{T+1}, s{T+1}, 3\ns_add_u32 s{T}, s{T}, s{T+1}")
        a(f"s_and_b32 s{T+1}, s{T+2}, 1\ns_lshl_b32 s{T+1}, s{T+1}, 12\ns_add_u32 s{T}, s{T}, s{T+1}")
        a(f"v_bfe_u32 v{T0}, v{l}, 4, 1\nv_lshlrev_b32 v{T0}, 11, v{T0}\nv_bfe_u32 v{T1}, v{l}, 2, 1\nv_lshl_add_u32 v{T0}, v{T1}, 10, v{T0}")
        a(f"v_and_b32 v{T1}, 3, v{l}\nv_lshl_add_u32 v{T0}, v{T1}, 1, v{T0}\nv_add_u32 v{T0}, s{T}, v{T0}")
        a(f"global_load_ushort v{R+4}, v{T0}, s[{S_MEM0}:{S_MEM0+1}]")
        a(f"global_load_ushort v{R+5}, v{T0}, s[{S_MEM0}:{S_MEM0+1}] offset:64")

    def comm_init2(self):
        a = self.a; R = MA
        a(f"v_lshl_or_b32 v{R+4}, v{R+5}, 16, v{R+4}\nv_min_u32 v{R+4}, -2, v{R+4}")
        a("s_mov_b64 exec, 0x00ff00ff")
        a(f"global_store_dword v{MST}, v{R+4}, s[{self.sMEM[0]}:{self.sMEM[0]+1}] sc1")
        a(f"global_store_dword v{MST}, v{R}, s[{self.sMEM[1]}:{self.sMEM[1]+1}] sc1")
        a("s_mov_b64 exec, -1")

    def announce(self, off):
        a = self.a; T = self.sT
        a(f"s_getreg_b32 s{T}, hwreg(HW_REG_XCC_ID)\ns_and_b32 s{T}, s{T}, 15\ns_lshl_b32 s{T}, 1, s{T}")
        a(f"v_mov_b32 v{T0}, {off+4}\nv_mov_b32 v{T1}, s{T}")
        a(f"s_mov_b64 exec, s[{self.sW0}:{self.sW0+1}]")
        a(f"global_atomic_or v{T0}, v{T1}, s[{S_DBG}:{S_DBG+1}]")
        a("s_mov_b64 exec, -1")

    def group_arrive(self, off):
        a = self.a
        a(f"v_mov_b32 v{T0}, {off}\nv_mov_b32 v{T1}, 1")
        a(f"s_mov_b64 exec, s[{self.sW0}:{self.sW0+1}]")
        a(f"global_atomic_add v{T0}, v{T1}, s[{S_DBG}:{S_DBG+1}]")
        a("s_mov_b64 exec, -1")

    def group_wait(self, off):
        a = self.a; T = self.sT
        l0, l1 = a.newlabel('Lgb'), a.newlabel('Lgb')
        a(f"v_mov_b32 v{T0}, {off}")
        a.label(l0)
        a(f"global_load_dwordx2 v[{MA}:{MA+1}], v{T0}, s[{S_DBG}:{S_DBG+1}] sc1")
        a(f"s_add_u32 s{self.sSPIN}, s{self.sSPIN}, 1\ns_cmp_gt_u32 s{self.sSPIN}, 0x100000\ns_cbranch_scc1 {l1}")
        a(f"s_waitcnt vmcnt(0)\nv_readfirstlane_b32 s{T}, v{MA}")
        a(f"s_cmp_lt_u32 s{T}, 32\ns_cbranch_scc1 {l0}")
        a.label(l1)
        a(f"s_waitcnt vmcnt(0)\nv_readfirstlane_b32 s{T}, v{MA+1}")
        a(f"s_bcnt1_i32_b32 s{S_LOCAL}, s{T}")

    def ready_slow(self, entry, back, want_next):
        a = self.a; R = self.sRDY
        a.label(entry)
        again = a.newlabel('Lrdy')
        a.label(again)
        a(f"global_load_dword v{FLG}, v{FAD}, s[{S_WS}:{S_WS+1}] sc1")
        a(f"s_add_u32 s{self.sSPIN}, s{self.sSPIN}, 1\ns_cmp_gt_u32 s{self.sSPIN}, 0x100000\ns_cbranch_scc1 {back}")
        a(f"s_waitcnt vmcnt(0)\nv_cmp_le_u32 s[{R}:{R+1}], 32, v{FLG}")
        a(f"s_ff0_i32_b64 s{self.sUPTO}, s[{R}:{R+1}]")
        a(f"s_add_u32 s{self.sT}, s{self.sSTEP}, {want_next}\ns_cmp_lt_u32 s{self.sT}, s{self.sUPTO}\ns_cbranch_scc0 {again}")
        a(f"s_branch {back}")

    def ready_check(self, want_next):
        if not self.flags: return
        a = self.a
        entry, back = a.newlabel('Lrs'), a.newlabel('Lrb')
        a(f"s_add_u32 s{self.sT}, s{self.sSTEP}, {want_next}\ns_cmp_lt_u32 s{self.sT}, s{self.sUPTO}\ns_cbranch_scc0 {entry}")
        a.label(back)
        self.ool.append(lambda: self.ready_slow(entry, back, want_next))

    def prefetch_groups(self, p):
        ld = " sc1" if self.flags else ""
        return [[f"s_add_u32 m0, s{self.sKXL}, {p*8192}", f"global_load_dwordx4 v[{VX+8*p}:{VX+8*p+3}], v{L16}, s[{self.sVX}:{self.sVX+1}]{ld}"],
                [f"global_load_lds_dwordx4 v{L16}, s[{self.sKX}:{self.sKX+1}]{ld}"],
                [f"global_load_lds_dwordx4 v{L16}, s[{self.sKX}:{self.sKX+1}] offset:1024{ld}"],
                [f"global_load_dwordx4 v[{VX+8*p+4}:{VX+8*p+7}], v{L16}, s[{self.sVX}:{self.sVX+1}] offset:1024{ld}"],
                [f"s_add_u32 s{self.sKX}, s{self.sKX}, 8192", f"s_addc_u32 s{self.sKX+1}, s{self.sKX+1}, 0"],
                [f"s_add_u32 s{self.sVX}, s{self.sVX}, 8192", f"s_addc_u32 s{self.sVX+1}, s{self.sVX+1}, 0"]]
    def pub_groups(self):
        g = [[f"global_store_dwordx4 v{L16}, v[{PKV}:{PKV+3}], s[{self.sKVM}:{self.sKVM+1}] sc1"],
             [f"s_add_u32 s{self.sKVM}, s{self.sKVM}, 4096", f"s_addc_u32 s{self.sKVM+1}, s{self.sKVM+1}, 0"]]
        return g
    def flag_groups(self):
        return [[f"v_mov_b32 v{T0}, s{self.sFMA}"], [f"v_mov_b32 v{T1}, 1"],
                ["s_mov_b64 exec, 1", f"global_store_dword v{T0}, v{T1}, s[{S_WS}:{S_WS+1}] sc1",
                 "s_mov_b64 exec, -1"], [f"s_add_u32 s{self.sFMA}, s{self.sFMA}, 4096"]]

    def smf(self, acc, afrag, bfrag):
        self.a(f"v_smfmac_f32_16x16x64_bf16 v[{acc}:{acc+3}], v[{afrag}:{afrag+3}], {bfrag}, v{IDX}")
    def frag(self, mat, sig):
        k, base = self.loc[(mat, sig // 2)]
        return f"{k}[{base+8*(sig%2)}:{base+8*(sig%2)+7}]"

    def step(self, p, fail, done):
        a = self.a
        a.auto_lgkm = True; a.ds_out = []
        q = 1 - p
        ACC = {'q': QA, 'k': KA, 'v': VA}
        seq = []
        for s in range(8): seq += [('q', s), ('k', s), ('v', s)]
        for s in range(8, 16): seq += [('q', s), ('k', s)]
        seq += [('v', s) for s in (8, 9, 10, 12, 13, 11, 14, 15)]
        lq = [x for x in seq if self.loc[(x[0], x[1] // 2)][0] == 'l']
        assert len(lq) == 14
        def lread(n):
            if n >= len(lq): return []
            m, s = lq[n]; buf = WB + 8*(n % 3); slot = self.loc[(m, s // 2)][1]
            r_, o_ = self.lslot_addr(slot, (s % 2)*2048)
            return [f"ds_read_b128 v[{buf}:{buf+3}], v{r_} offset:{o_}", f"ds_read_b128 v[{buf+4}:{buf+7}], v{r_} offset:{o_+1024}"]
        abuf = {}
        def aread(s, b):
            abuf[s] = MA + 4*b
            return f"ds_read_b128 v[{MA+4*b}:{MA+4*b+3}], v{DUP} offset:{L_MEMX + s*512}"
        def gemm(i):
            m, s = seq[i]
            if (m, s) in lq:
                n = lq.index((m, s)); buf = WB + 8*(n % 3)
                self.smf(ACC[m], abuf[s], f"v[{buf}:{buf+7}]")
                for x in lread(n + 3): a(x)
            else:
                self.smf(ACC[m], abuf[s], self.frag(m, s))
        def zero(r, n): return [f"v_mov_b64 v[{r+2*i}:{r+2*i+1}], 0" for i in range(n // 2)]
        def prework():
            for n in range(3):
                for x in lread(n): a(x)
            for x in zero(QA, 12): a(x)
            a(f"v_mov_b64 v[{XF}:{XF+1}], -1\nv_mov_b64 v[{XF+2}:{XF+3}], -1")
        self._prework_text = sum([lread(n) for n in range(3)], []) + zero(QA, 12) + [f"v_mov_b64 v[{XF}:{XF+1}], -1", f"v_mov_b64 v[{XF+2}:{XF+3}], -1"]
        nool0 = len(self.ool)
        loopA = a.newlabel('LlA')
        PA = XF + 8
        self.nstamp('pre')
        R = XF
        PA2 = MA + 16
        def loadsA(d):
            for j in range(2):
                a(f"global_load_dwordx4 v[{d+4*j}:{d+4*j+3}], v{MX0}, s[{self.sMEM[p]}:{self.sMEM[p]+1}] offset:{j*1024} sc1")
        def useA(d):
            a(f"ds_write_b128 v{MX0}, v[{d}:{d+3}] offset:{L_MEMX}")
            a(f"ds_write_b128 v{MX0}, v[{d+4}:{d+7}] offset:{L_MEMX+1024}")
            a(f"v_max3_u32 v{T0}, v{d}, v{d+1}, v{d+2}\nv_max3_u32 v{T1}, v{d+3}, v{d+4}, v{d+5}")
            a(f"v_max3_u32 v{T0}, v{T0}, v{d+6}, v{d+7}\nv_max_u32 v{T0}, v{T0}, v{T1}\nv_cmp_eq_u32 vcc, -1, v{T0}")
        okA, slowA = a.newlabel('LokA'), a.newlabel('LslA')
        for x in self.PA0: a(x)
        loadsA(PA)
        for x in self.PA1: a(x)
        loadsA(PA2)
        a("s_waitcnt vmcnt(2)")
        useA(PA)
        a(f"s_cbranch_vccnz {slowA}")
        a.label(okA)
        def rA():
            a.label(slowA)
            for (x, y) in ((PA, PA2), (PA2, PA)):
                a("s_mov_b64 exec, vcc")
                loadsA(x)
                a("s_mov_b64 exec, -1\ns_waitcnt vmcnt(2)")
                useA(y)
                a(f"s_cbranch_vccz {okA}")
            a(f"s_add_u32 s{self.sSPIN}, s{self.sSPIN}, 1\ns_cmp_lt_u32 s{self.sSPIN}, 0x80000\ns_cbranch_scc1 {slowA}")
            a(f"s_branch {okA}")
        self.ool.append(rA)
        self.nstamp('pollA')
        a("s_waitcnt lgkmcnt(0)\ns_barrier")
        self.nstamp('b1')
        for s in range(4): a(aread(s, s))
        a("s_waitcnt vmcnt(0)")
        for s in range(4, 8): a(aread(s, s))
        a("s_mov_b64 exec, 0x00ff00ff")
        a(f"global_store_dword v{MST}, v{R}, s[{self.sMEM[q]}:{self.sMEM[q]+1}]{self.flavor}")
        a("s_mov_b64 exec, -1")
        if self.flags and self.early:
            a(f"v_cmp_le_u32 s[{self.sRDY}:{self.sRDY+1}], 32, v{FLG}")
            a(f"s_ff0_i32_b64 s{self.sUPTO}, s[{self.sRDY}:{self.sRDY+1}]")
            self.ready_check(1)
        F = self.prefetch_groups(q)
        nslow = 7
        if self.flags:
            F += self.flag_groups(); nslow = 8
            if self.early:
                F += [[f"s_not_b64 exec, s[{self.sRDY}:{self.sRDY+1}]", "s_or_b32 exec_hi, exec_hi, 0x80000000", f"global_load_dword v{FLG}, v{FAD}, s[{S_WS}:{S_WS+1}] sc1", "s_mov_b64 exec, -1"]]; nslow = 9
        F += [[f"global_store_dwordx4 v{L16}, v[{R}:{R+3}], s[{self.sINB[q]}:{self.sINB[q]+1}]{self.flavor}"], [],
              [f"global_store_dwordx4 v{L16}, v[{R}:{R+3}], s[{self.sINB[q]}:{self.sINB[q]+1}] offset:1024{self.flavor}"]]
        for i in range(40):
            gemm(i)
            m, s = seq[i]
            if m == 'v': a(aread(s + 8, s))
            if (m == 'q' or s >= 8) and F:
                for x in F.pop(0): a(x)
            self.nstamp(f'g{i}')
        assert not F
        self.nstamp('qk_end')
        kxdst = {0: MA, 1: MA + 16, 2: QA, 3: MA + 8}
        def kx_read(kk):
            d = kxdst[kk]
            return [f"ds_read_b128 v[{d+4*t}:{d+4*t+3}], v{L16} offset:{L_KX + p*8192 + t*4096 + kk*1024}" for t in range(2)]
        def xread(kk):
            for rho in range(2):
                d = XF + 4*kk + 2*rho
                a(f"ds_read_b64_tr_b16 v[{d}:{d+1}], v{QKR} offset:{L_QK + kk*1024 + rho*512}")
        gemm(40); gemm(41)
        a(f"v_cvt_pk_bf16_f32 v{T0}, v{QA}, v{QA+1}\nv_cvt_pk_bf16_f32 v{T1}, v{QA+2}, v{QA+3}")
        a(f"v_cvt_pk_bf16_f32 v{PKV}, v{KA}, v{KA+1}\nv_cvt_pk_bf16_f32 v{PKV+1}, v{KA+2}, v{KA+3}")
        a(f"ds_write_b128 v{QKW}, v[{T0}:{T0+3}]")
        for x in kx_read(0): a(x)
        gemm(42)
        for x in kx_read(2): a(x)
        gemm(43); gemm(44)
        for x in kx_read(1): a(x)
        self.nstamp('b2pre')
        a("s_waitcnt lgkmcnt(6)\ns_barrier")
        self.nstamp('b2')
        xread(0); xread(2); xread(1); xread(3)
        gemm(45)
        for x in kx_read(3): a(x)
        gemm(46)
        gemm(47)
        self.nstamp('v_end')
        SX0, SX1, SM = WB + 8, WB + 12, WB + 16
        PX, PM, ONES = WB, WB + 4, WB + 20
        VM0, VM1 = VA, VA + 2
        def smfma(kk, first):
            kx = kxdst[kk]; X = XF + 4*kk
            for (D, A_, c0) in ((SM, X, f"v[{CM}:{CM+3}]"), (SX0, kx, "0"), (SX1, kx + 4, "0")):
                a(f"v_mfma_f32_16x16x32_bf16 v[{D}:{D+3}], v[{A_}:{A_+3}], v[{X}:{X+3}], " + (c0 if first else f"v[{D}:{D+3}]"))
        smfma(0, True)
        a(f"v_mov_b64 v[{ONES}:{ONES+1}], s[{self.sONES}:{self.sONES+1}]\nv_mov_b64 v[{ONES+2}:{ONES+3}], s[{self.sONES}:{self.sONES+1}]")
        smfma(2, False)
        a(f"v_cvt_pk_bf16_f32 v{PKV+2}, v{VA}, v{VA+1}\nv_cvt_pk_bf16_f32 v{PKV+3}, v{VA+2}, v{VA+3}")
        smfma(1, False)
        for g in self.pub_groups():
            for x in g: a(x)
        a(f"v_mov_b64 v[{VM0}:{VM0+1}], v[{PKV+2}:{PKV+3}]\nv_mov_b64 v[{VM1}:{VM1+1}], v[{PKV+2}:{PKV+3}]")
        smfma(3, False)
        if p == 1:
            a(f"s_cmp_ge_u32 s{self.sSTEP}, 63\ns_cbranch_scc1 {done}")
        a(f"v_permlane32_swap_b32 v{VM0}, v{VM1}\nv_permlane32_swap_b32 v{VM0+1}, v{VM1+1}")
        OL = MA
        oslot = self.loc[('o', 0)][1]
        for i in range(4):
            r_, o_ = self.lslot_addr(oslot, i*1024)
            a(f"ds_read_b128 v[{OL+4*i}:{OL+4*i+3}], v{r_} offset:{o_}")
        self.nstamp('s_end')
        M, TT = T0, T1
        S = [SX0+i for i in range(4)] + [SX1+i for i in range(4)] + [SM+i for i in range(4)]
        OUT = MA + 16
        zo = zero(OUT, 16)
        a(f"v_max3_f32 v{M}, v{S[8]}, v{S[9]}, v{S[10]}\nv_max3_f32 v{M}, v{M}, v{S[11]}, v{S[0]}")
        a(f"v_max3_f32 v{TT}, v{S[1]}, v{S[2]}, v{S[3]}\nv_max3_f32 v{M}, v{M}, v{S[4]}, v{S[5]}")
        a(f"v_max3_f32 v{TT}, v{TT}, v{S[6]}, v{S[7]}\nv_max_f32 v{M}, v{M}, v{TT}")
        a(f"v_mov_b32 v{TT}, v{M}")
        a(zo[0]); a(zo[1])
        a(f"v_permlane32_swap_b32 v{M}, v{TT}\nv_max_f32 v{M}, v{M}, v{TT}")
        a(f"v_mov_b32 v{TT}, v{M}")
        a(zo[2]); a(zo[3])
        a(f"v_permlane16_swap_b32 v{M}, v{TT}\nv_max_f32 v{M}, v{M}, v{TT}")
        a(f"v_mul_f32 v{M}, s{self.sC}, v{M}")
        pkf = lambda r: f"v_pk_fma_f32 v[{r}:{r+1}], v[{r}:{r+1}], s[{self.sC2}:{self.sC2+1}], v[{M}:{M+1}] op_sel_hi:[1,1,0] neg_lo:[0,0,1] neg_hi:[0,0,1]"
        for r in S[0:8:2]: a(pkf(r))
        for r in S[:8]: a(f"v_exp_f32 v{r}, v{r}")
        for r in S[8:12:2]: a(pkf(r))
        for i in range(4): a(f"v_cvt_pk_bf16_f32 v{PX+i}, v{S[2*i]}, v{S[2*i+1]}")
        OT0, OT1 = QA, KA
        LLX = SX0
        V_ = VX + 8*p
        self.nstamp('sm_end')
        a(f"v_exp_f32 v{S[8]}, v{S[8]}")
        a(f"v_mfma_f32_16x16x32_bf16 v[{LLX}:{LLX+3}], v[{ONES}:{ONES+3}], v[{PX}:{PX+3}], 0")
        a(f"v_exp_f32 v{S[9]}, v{S[9]}")
        a(f"v_mfma_f32_16x16x32_bf16 v[{OT0}:{OT0+3}], v[{V_}:{V_+3}], v[{PX}:{PX+3}], 0")
        a(f"v_exp_f32 v{S[10]}, v{S[10]}")
        a(f"v_mfma_f32_16x16x32_bf16 v[{OT1}:{OT1+3}], v[{V_+4}:{V_+7}], v[{PX}:{PX+3}], 0")
        a(f"v_exp_f32 v{S[11]}, v{S[11]}")
        a(f"v_cvt_pk_bf16_f32 v{PM}, v{S[8]}, v{S[9]}\nv_cvt_pk_bf16_f32 v{PM+1}, v{S[10]}, v{S[11]}")
        a(zo[4]); a(zo[5])
        a(f"v_mfma_f32_16x16x16_bf16 v[{LLX}:{LLX+3}], v[{ONES}:{ONES+1}], v[{PM}:{PM+1}], v[{LLX}:{LLX+3}]")
        a(zo[6]); a(zo[7])
        a(f"v_mfma_f32_16x16x16_bf16 v[{OT0}:{OT0+3}], v[{VM0}:{VM0+1}], v[{PM}:{PM+1}], v[{OT0}:{OT0+3}]")
        a(f"v_mfma_f32_16x16x16_bf16 v[{OT1}:{OT1+3}], v[{VM1}:{VM1+1}], v[{PM}:{PM+1}], v[{OT1}:{OT1+3}]")
        a(f"v_rcp_f32 v{M}, v{LLX}")
        a("s_mov_b32 exec_lo, 0xff00ff00\ns_mov_b32 exec_hi, 0xff00ff00")
        OP = SX1
        for i in (0, 2): a(f"v_pk_mul_f32 v[{OT0+i}:{OT0+i+1}], v[{OT0+i}:{OT0+i+1}], v[{M}:{M+1}] op_sel_hi:[1,0]")
        for i in range(2): a(f"v_cvt_pk_bf16_f32 v{OP+i}, v{OT0+2*i}, v{OT0+2*i+1}")
        for i in (0, 2): a(f"v_pk_mul_f32 v[{OT1+i}:{OT1+i+1}], v[{OT1+i}:{OT1+i+1}], v[{M}:{M+1}] op_sel_hi:[1,0]")
        for i in range(2): a(f"v_cvt_pk_bf16_f32 v{OP+2+i}, v{OT1+2*i}, v{OT1+2*i+1}")
        a(f"ds_write_b128 v{OW}, v[{OP}:{OP+3}]")
        a("s_mov_b64 exec, -1")
        self.nstamp('b3pre')
        a(f"s_waitcnt vmcnt({nslow}) lgkmcnt(0)")
        self.nstamp('b3v')
        a("s_barrier")
        self.nstamp('b3')
        OA = XF
        for ko in range(4):
            a(f"ds_read_b128 v[{OA+4*ko}:{OA+4*ko+3}], v{DUP} offset:{L_O + ko*512}")
        self.nstamp('oex')
        PK = MA
        def ofrag(j, ko):
            k, base = self.loc[('o', (ko // 2)*4 + j)]
            if k == 'l': k, base = 'v', OL
            return f"{k}[{base+8*(ko%2)}:{base+8*(ko%2)+7}]"
        def fin(tq):
            A0, A1 = OUT + 8*tq, OUT + 8*tq + 4
            sb = (self.sPART if tq == 0 else self.sPART2)[p]
            return [f"v_cvt_pk_bf16_f32 v{PK+4*tq+i}, v{A0+i}, v{A1+i}" for i in range(4)] + \
                   [f"global_store_dwordx4 v{PST}, v[{PK+4*tq}:{PK+4*tq+3}], s[{sb}:{sb+1}]{self.flavor}"]
        for ko in range(4):
            for j in range(2): self.smf(OUT + 4*j, OA + 4*ko, ofrag(j, ko))
        f0 = fin(0); n = 0
        for ko in range(4):
            for j in range(2, 4):
                self.smf(OUT + 4*j, OA + 4*ko, ofrag(j, ko))
                if n >= 1:
                    for x in f0[:1]: a(x)
                    f0 = f0[1:]
                n += 1
        for x in f0 + fin(1): a(x)
        self.nstamp('ost')
        IN, RR = MA + 8, XF + 4
        loopB = a.newlabel('LlB')
        IN2 = MA + 24
        def loadsB(d):
            for i in range(2):
                a(f"global_load_dwordx4 v[{d+4*i}:{d+4*i+3}], v{L16}, s[{self.sINB[p]}:{self.sINB[p]+1}] offset:{i*1024} sc1")
        def useB(d):
            a(f"v_mfma_f32_16x16x32_bf16 v[{RR}:{RR+3}], v[{SEL}:{SEL+3}], v[{d}:{d+3}], 0")
            a(f"v_max3_u32 v{T0}, v{d}, v{d+1}, v{d+2}")
            a(f"v_mfma_f32_16x16x32_bf16 v[{RR}:{RR+3}], v[{SEL}:{SEL+3}], v[{d+4}:{d+7}], v[{RR}:{RR+3}]")
            a(f"v_max3_u32 v{T1}, v{d+3}, v{d+4}, v{d+5}\nv_max3_u32 v{T0}, v{T0}, v{d+6}, v{d+7}\nv_max_u32 v{T0}, v{T0}, v{T1}\nv_cmp_eq_u32 vcc, -1, v{T0}")
        def redB():
            for ror in (4, 8):
                for i in range(4): a(f"v_add_f32_dpp v{RR+i}, v{RR+i}, v{RR+i} row_ror:{ror} row_mask:0xf bank_mask:0xf")
            a(f"v_cvt_pk_bf16_f32 v{RR}, v{RR}, v{RR+1}\nv_cvt_pk_bf16_f32 v{RR+1}, v{RR+2}, v{RR+3}")
            a(f"v_cndmask_b32 v{RR}, v{RR}, v{RR+1}, s[{self.sN4}:{self.sN4+1}]")
        okB = a.newlabel('LokB')
        for x in self.PB0: a(x)
        loadsB(IN)
        for x in self.PB1: a(x)
        loadsB(IN2)
        prework()
        a("s_waitcnt vmcnt(2)")
        self.nstamp('pollB')
        useB(IN)
        a(f"s_cbranch_vccnz {loopB}")
        a.label(okB)
        redB()
        def rB():
            a.label(loopB)
            for (x, y) in ((IN, IN2), (IN2, IN)):
                a("s_mov_b64 exec, vcc")
                loadsB(x)
                a("s_mov_b64 exec, -1\ns_waitcnt vmcnt(2)")
                useB(y)
                a(f"s_cbranch_vccz {okB}")
            a(f"s_add_u32 s{self.sSPIN}, s{self.sSPIN}, 1\ns_cmp_lt_u32 s{self.sSPIN}, 0x80000\ns_cbranch_scc1 {loopB}")
            a(f"s_branch {okB}")
        self.ool.append(rB)
        a("s_mov_b64 exec, 0x00ff00ff")
        a(f"global_store_dword v{MST}, v{RR}, s[{self.sMEM[q]}:{self.sMEM[q]+1}]{self.flavor}")
        a("s_mov_b64 exec, -1")
        self.nstamp('end')
        if self.stamps and self.PERSTEP:
            a("s_waitcnt lgkmcnt(0)")
            a(f"s_lshl_b32 s100, s{S_WAVE}, 6\ns_add_u32 s100, s100, s{self.sSTEP}\ns_lshl_b32 s100, s100, 3\ns_add_u32 s100, s100, 30720")
            a(f"s_sub_u32 s101, s{self.sST+14}, s{self.sST+12}")
            a(f"v_mov_b32 v{XF+8}, s{self.sST}\nv_mov_b32 v{XF+9}, s101\nv_mov_b32 v{T0}, s100")
            a(f"ds_write_b64 v{T0}, v[{XF+8}:{XF+9}]\ns_waitcnt lgkmcnt(0)")
        if self.stamps:
            a("s_waitcnt lgkmcnt(0)")
            for i in range(7):
                a(f"s_sub_u32 s{self.sT}, s{self.sST+2*i+2}, s{self.sST+2*i}\ns_cmp_ge_u32 s{self.sSTEP}, 21\ns_cselect_b32 s{self.sT}, s{self.sT}, 0\ns_add_u32 s{6+i}, s{6+i}, s{self.sT}")
        a(f"s_add_u32 s{self.sSTEP}, s{self.sSTEP}, 1")
        a.auto_lgkm = False
        self._nool = len(self.ool) - nool0

    def emit_prework(self):
        a = self.a
        for t in self._prework_text: a(t)

    def body(self, dbg_off):
        a = self.a
        rtstamp(a, 0)
        self.dbg_off = dbg_off
        self.setup(); self.announce(dbg_off); self.comm_init()
        a(f"s_mov_b32 s{self.sSTEP}, 0\ns_mov_b32 s{self.sUPTO}, 0\ns_mov_b32 s{self.sSPIN}, 0")
        rtstamp(a, 1)
        self.load_weights()
        rtstamp(a, 2); rtstamp(a, 3); rtstamp(a, 4)
        if self.stamps:
            for i in range(8): a(f"s_mov_b32 s{6+i}, 0")
            a("s_memtime s[14:15]\ns_waitcnt lgkmcnt(0)")
        done, remote = a.newlabel('Ldone'), a.newlabel('Lremote')
        class _N:
            pass
        real = self.a
        self.a = Asm(); self.step(0, done, done); self.ool = self.ool[:len(self.ool) - self._nool]; self.a = real
        self.emit_prework()
        a(f"s_cmp_lg_u32 s{S_LOCAL}, 1\ns_cbranch_scc1 {remote}")
        for flavor in ('', ' sc1'):
            self.flavor = flavor
            if flavor: a.label(remote)
            else: a.label("Lrec_local")
            for early in ((True, False) if (self.flags and not flavor) else (True,)):
                self.early = early
                loop = a.newlabel('Lrec')
                a.label(loop)
                self.step(0, done, done)
                self.step(1, done, done)
                if early and self.flags and not flavor:
                    a(f"s_cmp_lg_u32 s{self.sUPTO}, -1\ns_cbranch_scc1 {loop}")
                else:
                    a(f"s_branch {loop}")
            for f in self.ool: f()
            self.ool = []
        a.label(done)
        a("s_waitcnt vmcnt(0)")
        if self.flags:
            for g in self.flag_groups():
                for x in g: a(x)
        rtstamp(a, 5)
        if self.stamps and self.PERSTEP:
            a(f"s_lshl_b32 s100, s{S_WAVE}, 9\ns_add_u32 s100, s100, 30720\nv_lshrrev_b32 v{T0}, 1, v{L16}\nv_add_u32 v{T1}, s100, v{T0}")
            a(f"ds_read_b64 v[{XF}:{XF+1}], v{T1}\ns_waitcnt lgkmcnt(0)")
            a(f"s_lshl_b32 s100, s{S_RANK}, 2\ns_add_u32 s100, s100, s{S_WAVE}\ns_lshl_b32 s100, s100, 9\ns_add_u32 s100, s100, {OFF_TRACE + 0x100000}\nv_add_u32 v{T0}, s100, v{T0}")
            a(f"global_store_dwordx2 v{T0}, v[{XF}:{XF+1}], s[{S_WS}:{S_WS+1}]")
        if self.stamps:
            T = self.sT
            a(f"s_memtime s[{T}:{T+1}]\ns_waitcnt lgkmcnt(0)\ns_sub_u32 s13, s{T}, s14")
            a(f"s_lshl_b32 s{T}, s{S_RANK}, 2\ns_add_u32 s{T}, s{T}, s{S_WAVE}\ns_lshl_b32 s{T}, s{T}, 6\ns_add_u32 s{T}, s{T}, {OFF_TRACE}\nv_mov_b32 v1, s{T}")
            for i in range(8): a(f"v_mov_b32 v{16+i}, s{6+i}")
            a(f"v_mov_b32 v24, s{self.sSTEP}")
            a("s_mov_b64 exec, 1")
            a(f"global_store_dwordx4 v1, v[16:19], s[{S_WS}:{S_WS+1}]\nglobal_store_dwordx4 v1, v[20:23], s[{S_WS}:{S_WS+1}] offset:16\nglobal_store_dword v1, v24, s[{S_WS}:{S_WS+1}] offset:32")
            a("s_waitcnt vmcnt(0)")
```

```python
import gen_merged as g
from rec4 import Rec4
names = []
V = {
 "v2": (['s_waitcnt vmcnt(0)'], ['s_sleep 2'], ['s_waitcnt vmcnt(1)'], ['s_sleep 2']),
 "x1": (['s_waitcnt vmcnt(0)'], ['s_sleep 2'], ['s_waitcnt vmcnt(1)', 's_sleep 1'], ['s_sleep 2']),
 "x2": (['s_waitcnt vmcnt(0)'], ['s_sleep 2'], ['s_waitcnt vmcnt(0)'], ['s_sleep 2']),
 "x3": (['s_waitcnt vmcnt(1)', 's_sleep 2'], ['s_sleep 2'], ['s_waitcnt vmcnt(1)', 's_sleep 1'], ['s_sleep 2']),
 "x4": (['s_waitcnt vmcnt(1)', 's_sleep 3'], ['s_sleep 1'], ['s_waitcnt vmcnt(1)', 's_sleep 1'], ['s_sleep 1']),
 "x5": (['s_waitcnt vmcnt(0)'], ['s_sleep 1'], ['s_waitcnt vmcnt(0)'], ['s_sleep 1']),
 "x6": (['s_waitcnt vmcnt(1)', 's_sleep 2'], ['s_sleep 2'], ['s_waitcnt vmcnt(0)'], ['s_sleep 2']),
}
for k, v in V.items():
    Rec4.PA0, Rec4.PA1, Rec4.PB0, Rec4.PB1 = v
    n = f"scan_{k}.s"
    open("../" + n, "w").write(g.build())
    names.append(n)
print(" ".join(names))
print(", ".join(f'"work/{n}"' for n in names))
```

```python
import sys
from asmlib import *
from rec import *
from rec5 import Rec5 as Rec2
from gemm1 import Gemm1
from attn import *
NAME = "gated_mix__sliding_block__memory_aug_recurrent_mem_tr__prompt_kernel"
S_WI = 8
SPIN = 10

def wait_init(a, va, vb, st):
    l, ld = a.newlabel('Lwi'), a.newlabel('Lwi')
    a(f"v_mov_b32 v{va}, {DBG_INIT}\ns_mov_b32 s{st+1}, 0")
    a.label(l)
    a(f"global_load_dword v{vb}, v{va}, s[{S_DBG}:{S_DBG+1}] sc1")
    a(f"s_add_u32 s{st+1}, s{st+1}, 1\ns_cmp_gt_u32 s{st+1}, 0x100000\ns_cbranch_scc1 {ld}")
    a(f"s_waitcnt vmcnt(0)\nv_readfirstlane_b32 s{st}, v{vb}\ns_cmp_lt_u32 s{st}, 8\ns_cbranch_scc1 {l}")
    a.label(ld)

def wait_flag(a, va, vb, s_idx, base, mask, target, st, sleep=4, s_sub=None):
    l, ld = a.newlabel('Lwf'), a.newlabel('Lwf')
    a(f"s_lshl_b32 s{st}, s{s_idx}, 7\ns_add_u32 s{st}, s{st}, {base}")
    if s_sub is not None:
        a(f"s_lshl_b32 s{SPIN}, s{s_sub}, 2\ns_add_u32 s{st}, s{st}, s{SPIN}")
    a(f"v_mov_b32 v{va}, s{st}")
    a.label(l)
    a(f"global_load_dword v{vb}, v{va}, s[{S_WS}:{S_WS+1}] sc1")
    a(f"s_add_u32 s{SPIN}, s{SPIN}, 1\ns_cmp_gt_u32 s{SPIN}, 0x80000\ns_cbranch_scc1 {ld}")
    a(f"s_waitcnt vmcnt(0)\nv_readfirstlane_b32 s{st}, v{vb}\ns_and_b32 s{st}, s{st}, {mask}\ns_cmp_eq_u32 s{st}, {target}\ns_cbranch_scc1 {ld}")
    a(f"s_sleep {sleep}\ns_branch {l}")
    a.label(ld)

def touch_pages(a, va, vb):
    a(f"v_min_u32 v{va}, 46, v0\nv_lshlrev_b32 v{va}, 21, v{va}\nv_add_u32 v{va}, 0x1fff00, v{va}")
    a(f"global_load_dword v{vb}, v{va}, s[{S_WS}:{S_WS+1}] sc1")

def signal(a, va, vb, s_idx, base, st):
    a(f"s_lshl_b32 s{st}, s{s_idx}, 7\ns_add_u32 s{st}, s{st}, {base}\nv_mov_b32 v{va}, s{st}\nv_mov_b32 v{vb}, 1")
    a("s_mov_b64 exec, 1")
    a(f"global_atomic_add v{va}, v{vb}, s[{S_WS}:{S_WS+1}]")
    a("s_mov_b64 exec, -1")

def build(stamps=False, name=NAME, noworkers=False):
    a = Asm()
    RT_ON[0] = stamps
    a.raw("; @launch grid=(256,1,1) block=(256,1,1) lds=163840")
    a.raw('.amdgcn_target "amdgcn-amd-amdhsa--gfx950"\n.text')
    a.raw(f".globl {name}\n.p2align 8\n.type {name},@function\n{name}:")
    a("s_cmp_ge_u32 s2, 256\ns_cbranch_scc1 L_end")
    prologue_common(a)
    a("s_and_b32 s6, s2, 7\ns_cmp_lg_u32 s6, 0\ns_cbranch_scc1 L_worker")
    a(f"s_lshr_b32 s{S_RANK}, s2, 3")
    Rec2(a, stamps=stamps, flags=not noworkers, wait_init=wait_init).body(DBG_BAR)
    a("s_endpgm")
    a.label("L_worker")
    if noworkers: a("s_endpgm")
    a(f"s_lshr_b32 s{S_WI}, s2, 3\ns_sub_u32 s12, s6, 1")
    a(f"s_lshl_b32 s6, s12, 3\ns_lshr_b32 s7, s{S_WI}, 2\ns_add_u32 s6, s6, s7\ns_and_b32 s7, s{S_WI}, 3")
    a("s_cmp_lt_u32 s6, 54\ns_cbranch_scc1 L_gemm1")
    a(f"s_sub_u32 s6, s{S_WI}, 24\ns_lshl_b32 s6, s6, 2\ns_add_u32 s6, s6, s{S_WAVE}\ns_mul_i32 s6, s6, 10240\ns_add_u32 s6, s6, {OFF_FLAG}\nv_lshlrev_b32 v1, 4, v0\nv_add_u32 v1, s6, v1")
    for i in range(4): a(f"v_mov_b32 v{4+i}, 0")
    for i in range(10):
        if i and i % 4 == 0: a("v_add_u32 v1, 4096, v1")
        a(f"global_store_dwordx4 v1, v[4:7], s[{S_WS}:{S_WS+1}] offset:{(i%4)*1024} sc1")
    a("s_waitcnt vmcnt(0)\ns_barrier")
    a(f"s_cmp_lg_u32 s{S_WAVE}, 0\ns_cbranch_scc1 L_noinit")
    a(f"v_mov_b32 v1, {DBG_INIT}\nv_mov_b32 v2, 1\ns_mov_b64 exec, 1")
    a(f"global_atomic_add v1, v2, s[{S_DBG}:{S_DBG+1}]\ns_mov_b64 exec, -1")
    a.label("L_noinit")
    wait_init(a, 1, 2, 44)
    a("s_branch L_phase2")
    a.label("L_gemm1")
    rtstamp(a, 0)
    Gemm1(a, st_flavor=" sc1", flags=True, wait_init=wait_init).body()
    a.label("L_phase2")
    a(f"s_mov_b32 s{SPIN}, 0")
    rtstamp(a, 2)
    a(f"s_cmp_lt_u32 s{S_WI}, 16\ns_cbranch_scc1 L_stage2")
    a(f"s_lshl_b32 s9, s12, 4\ns_add_u32 s9, s9, s{S_WI}\ns_sub_u32 s9, s9, 16\ns_lshl_b32 s9, s9, 2\ns_add_u32 s9, s9, s{S_WAVE}")
    aa = AttnA(a, " sc1", " sc1"); aa.setup()
    a.label("L_aa_loop")
    a("s_and_b32 s6, s9, 15\ns_lshr_b32 s7, s9, 4")
    l, ld = a.newlabel('Lwa'), a.newlabel('Lwa')
    a(f"v_add_u32 v8, s7, v0\nv_subrev_u32 v8, 8, v8\nv_max_i32 v8, 0, v8\nv_lshlrev_b32 v8, 7, v8\nv_add_u32 v8, {OFF_FA1}, v8")
    a("s_mov_b64 exec, 0x1ff")
    a.label(l)
    a(f"global_load_dword v9, v8, s[{S_WS}:{S_WS+1}] sc1")
    a(f"s_add_u32 s{SPIN}, s{SPIN}, 1\ns_cmp_gt_u32 s{SPIN}, 0x80000\ns_cbranch_scc1 {ld}")
    a(f"s_waitcnt vmcnt(0)\nv_cmp_ne_u32 vcc, 6, v9\ns_cbranch_vccz {ld}\ns_sleep 8\ns_branch {l}")
    a.label(ld)
    a("s_mov_b64 exec, -1")
    aa.task()
    a("s_waitcnt vmcnt(0)")
    signal(a, 8, 9, 7, OFF_FAA, 76)
    a("s_add_u32 s9, s9, 448\ns_cmp_lt_u32 s9, 1024\ns_cbranch_scc1 L_aa_loop")
    rtstamp(a, 3)
    a(f"s_cmp_lt_u32 s{S_WI}, 24\ns_cbranch_scc1 L_xattn")
    a("s_endpgm")
    a.label("L_xattn")
    a(f"s_sub_u32 s6, s{S_WI}, 16\ns_lshl_b32 s6, s6, 2\ns_add_u32 s6, s6, s{S_WAVE}\ns_mov_b32 s7, s12")
    touch_pages(a, 252, 253)
    xa = AttnX(a, " sc1", " sc1"); xa.setup()
    a.label("L_xa_loop")
    wait_flag(a, 252, 253, 7, OFF_FKV, 0xffff, 32, 76)
    wait_flag(a, 252, 253, 7, OFF_FQ, 0xffff, 16, 76)
    xa.load_x()
    xa.compute_pre()
    l, ld = a.newlabel('Lwm'), a.newlabel('Lwm')
    a(f"s_lshl_b32 s76, s7, 5\ns_add_u32 s76, s76, s6\ns_lshl_b32 s76, s76, 7\ns_add_u32 s76, s76, {OFF_FM}\nv_lshlrev_b32 v252, 2, v0\nv_add_u32 v252, s76, v252")
    a("s_mov_b64 exec, 15")
    a.label(l)
    a(f"global_load_dword v253, v252, s[{S_WS}:{S_WS+1}] sc1")
    a(f"s_add_u32 s{SPIN}, s{SPIN}, 1\ns_cmp_gt_u32 s{SPIN}, 0x80000\ns_cbranch_scc1 {ld}")
    a(f"s_waitcnt vmcnt(0)\nv_cmp_eq_u32 vcc, 0, v253\ns_cbranch_vccz {ld}\ns_sleep 2\ns_branch {l}")
    a.label(ld)
    a("s_mov_b64 exec, -1")
    rtstamp(a, 4, 252, 253)
    xa.load_m()
    rtstamp(a, 5, 252, 253)
    xa.compute()
    rtstamp(a, 6, 252, 253)
    a("s_waitcnt vmcnt(0)")
    rtstamp(a, 7, 252, 253)
    a(f"s_lshl_b32 s76, s7, 5\ns_add_u32 s76, s76, s6\ns_lshl_b32 s76, s76, 2\ns_add_u32 s76, s76, {OFF_FX}\nv_mov_b32 v252, s76\nv_mov_b32 v253, 1\ns_mov_b64 exec, 1")
    a(f"global_store_dword v252, v253, s[{S_WS}:{S_WS+1}] sc1\ns_mov_b64 exec, -1")
    a("s_add_u32 s7, s7, 7\ns_cmp_lt_u32 s7, 64\ns_cbranch_scc1 L_xa_loop")
    rtstamp(a, 3)
    a("s_endpgm")
    a.label("L_stage2")
    a("s_barrier")
    a(f"s_mov_b32 s6, s{S_WI}\ns_mov_b32 s7, s12")
    touch_pages(a, 250, 251)
    def wt(s2, phase):
        a(f"s_lshr_b32 s11, s{s2.sTILE}, 1")
        if phase == 0: wait_flag(a, 1, 2, 11, OFF_FAA, 0xffff, 16, 44)
        else:
            l, ld = a.newlabel('Lwx'), a.newlabel('Lwx')
            a(f"s_cmp_lg_u32 s{S_WAVE}, 0\ns_cbranch_scc1 {ld}")
            a(f"s_lshl_b32 s44, s11, 7\ns_add_u32 s44, s44, {OFF_FX}\nv_and_b32 v1, 31, v0\nv_lshlrev_b32 v1, 2, v1\nv_add_u32 v1, s44, v1")
            a.label(l)
            a(f"global_load_dword v2, v1, s[{S_WS}:{S_WS+1}] sc1")
            a(f"s_add_u32 s{SPIN}, s{SPIN}, 1\ns_cmp_gt_u32 s{SPIN}, 0x80000\ns_cbranch_scc1 {ld}")
            a(f"s_waitcnt vmcnt(0)\nv_cmp_ne_u32 vcc, 1, v2\ns_cbranch_vccz {ld}\ns_sleep 2\ns_branch {l}")
            a.label(ld)
            a("s_barrier")
    Stage2(a, 7, wait_tile=wt, ld_flavor=" sc1").body()
    rtstamp(a, 3)
    a.label("L_end")
    a("s_endpgm")
    a.label("Lcode_end")
    a.raw('.section .rodata,"a"\n.p2align 6')
    a.raw(f'.amdhsa_kernel {name}')
    a.raw("  .amdhsa_next_free_vgpr 512\n  .amdhsa_next_free_sgpr 102\n  .amdhsa_accum_offset 256\n  .amdhsa_group_segment_fixed_size 0\n  .amdhsa_kernarg_size 112")
    a.raw("  .amdhsa_user_sgpr_count 2\n  .amdhsa_user_sgpr_kernarg_segment_ptr 1\n  .amdhsa_system_sgpr_workgroup_id_x 1\n.end_amdhsa_kernel")
    return a.text()
if __name__ == "__main__":
    open("../merged.s", "w").write(build())
    open("../merged_st.s", "w").write(build(stamps=True))
    for nm, st in (("A", ['pollA', 'b1', 'g8', 'g14', 'g23', 'g31', 'qk_end', 'b2pre']),
                   ("B", ['qk_end', 'b2pre', 'b2', 'v_end', 's_end', 'sm_end', 'b3pre', 'b3v']),
                   ("C", ['b3v', 'b3', 'oex', 'ost', 'pollB', 'end', 'zz1', 'zzz'])):
        Rec2.STAMPS = st
        open(f"../merged_st{nm}.s", "w").write(build(stamps=True))
    Rec2.STAMPS = ['pre', 'pollA', 'qk_end', 'v_end', 'sm_end', 'oex', 'ost', 'pollB']
    Rec2.PERSTEP = True
    open("../merged_stP.s", "w").write(build(stamps=True))
    Rec2.PERSTEP = False
    open("../merged_stN.s", "w").write(build(stamps=True, noworkers=True))
```

```python
from asmlib import *
from layout import *
from rec import (S_MEM0, S_WQ, S_WK, S_WV, S_WO, S_DBG, S_WS, S_WAVE, S_RANK, S_LOCAL, sadd64, rtstamp,
                 L_MEMX, L_KX, L_QK, L_O, L_W)
import math, struct

L16, DUP, MX0, MX1, MX2, MX3, IDX, QKW, QKR, OW, PST, MST, WL, LANE, T0, T1 = range(16)
WL2 = MX1
FAD, FLG = MX2, MX3
PKV = 16
SEL, CM = 20, 24
QA, KA, VA = 28, 32, 36
MA, WB, XF, VX, WREG = 40, 72, 96, 112, 128

class Rec5:
    OWN1 = 0
    PWEARLY = False
    CODEPF = True
    SPECIAL = True
    ALIGN = 0
    NPRE = 4
    RSTA = False
    PERSTEP = False
    PA0 = ['s_waitcnt vmcnt(0)']
    PA1 = ['s_sleep 2']
    PB0 = ['s_waitcnt vmcnt(1)', 's_sleep 1']
    PB1 = ['s_sleep 2']
    GAPA = 128
    GAPB = 128
    GAPB0 = 256
    GAPA0 = 64
    STAMPS = ['pre', 'pollA', 'qk_end', 'v_end', 'sm_end', 'oex', 'ost', 'pollB']
    def __init__(self, a, stamps=False, flags=False, wait_init=None):
        self.a = a; self.stamps = stamps; self.flags = flags; self.wait_init = wait_init
        self.flavor = ' sc1'
        self.sMEM = [44, 46]; self.sPART = [48, 50]; self.sPART2 = [52, 54]; self.sINB = [16, 18]
        self.sKX, self.sVX, self.sKVM = 56, 58, 60
        self.sONES = 62
        self.sT = 64
        self.sSTEP, self.sC = 68, 69
        self.sN4 = 70
        self.sW0 = 72
        self.sRDY = 74
        self.sUPTO = 76
        self.sSPIN = 77
        self.sKXL = 78
        self.sFMA = 79
        self.sC2 = 80
        self.sPC = 82
        self.sFMB = 36
        self.sST = 84
        self.lds_blocks = [('k', 0), ('k', 1), ('k', 2), ('k', 3), ('k', 4), ('k', 5), ('k', 6), ('o', 0)]
        allb = [(m, s) for m in 'qkv' for s in range(8)] + [('o', i) for i in range(8)]
        self.regblocks = [b for b in allb if b not in self.lds_blocks]
        assert len(self.regblocks) == 24
        self.loc = {}
        for i, b in enumerate(self.regblocks):
            self.loc[b] = ('a', 16*i) if i < 16 else ('v', WREG + 16*(i-16))
        for i, b in enumerate(self.lds_blocks):
            self.loc[b] = ('l', (i + 1) % 8)
        self.ool = []
        self.early = True

    def delay(self, cyc):
        n = cyc // 4
        while n > 0:
            k = min(n, 16); self.a(f"s_nop {k-1}"); n -= k

    def nstamp(self, name):
        if self.stamps and name in self.STAMPS:
            i = self.STAMPS.index(name)
            self.a(f"s_memtime s[{self.sST+2*i}:{self.sST+2*i+1}]")

    def setup(self):
        a = self.a; h, w, T = S_RANK, S_WAVE, self.sT
        a(f"v_mov_b32 v{LANE}, v0")
        l = LANE
        a(f"v_lshlrev_b32 v{L16}, 4, v{l}")
        a(f"v_lshrrev_b32 v{T0}, 4, v{l}\nv_lshlrev_b32 v{DUP}, 7, v{T0}\nv_and_b32 v{T0}, 7, v{l}\nv_lshl_add_u32 v{DUP}, v{T0}, 4, v{DUP}")
        a(f"s_lshl_b32 s{T}, s{w}, 11\nv_add_u32 v{MX0}, s{T}, v{L16}")
        a(f"v_and_b32 v{T0}, 8, v{l}\nv_cmp_ne_u32 vcc, 0, v{T0}")
        a(f"v_mov_b32 v{IDX}, 0x4444\nv_mov_b32 v{T1}, 0xeeee\nv_cndmask_b32 v{IDX}, v{IDX}, v{T1}, vcc")
        a(f"v_and_b32 v{T0}, 15, v{l}\nv_lshrrev_b32 v{T1}, 5, v{l}\nv_lshl_add_u32 v{T0}, v{T1}, 4, v{T0}")
        a(f"v_lshlrev_b32 v{T0}, 5, v{T0}\nv_bfe_u32 v{T1}, v{l}, 4, 1\nv_lshl_add_u32 v{T0}, v{T1}, 4, v{T0}")
        a(f"s_lshl_b32 s{T}, s{w}, 10\ns_add_u32 s{T}, s{T}, {L_QK}\nv_add_u32 v{QKW}, s{T}, v{T0}")
        a(f"v_lshrrev_b32 v{T0}, 2, v{l}\nv_lshlrev_b32 v{QKR}, 5, v{T0}\nv_and_b32 v{T0}, 1, v{l}\nv_lshl_add_u32 v{QKR}, v{T0}, 4, v{QKR}")
        a(f"v_bfe_u32 v{T0}, v{l}, 1, 1\nv_xor_b32 v{T0}, 1, v{T0}\nv_lshl_add_u32 v{QKR}, v{T0}, 3, v{QKR}")
        a(f"s_lshl_b32 s{T}, s{w}, 9\ns_add_u32 s{T}, s{T}, {L_O}\nv_add_u32 v{OW}, s{T}, v{DUP}")
        a(f"v_lshrrev_b32 v{T0}, 5, v{l}\nv_lshlrev_b32 v{PST}, 14, v{T0}\nv_bfe_u32 v{T0}, v{l}, 2, 2\nv_lshl_add_u32 v{PST}, v{T0}, 12, v{PST}")
        a(f"v_bfe_u32 v{T0}, v{l}, 4, 1\nv_lshl_add_u32 v{PST}, v{T0}, 11, v{PST}\nv_and_b32 v{T0}, 3, v{l}\nv_lshl_add_u32 v{PST}, v{T0}, 4, v{PST}")
        a(f"s_lshl_b32 s{T}, s{w}, 16\ns_lshl_b32 s{T+1}, s{h}, 6\ns_add_u32 s{T}, s{T}, s{T+1}\nv_add_u32 v{PST}, s{T}, v{PST}")
        a(f"s_lshl_b32 s{T+2}, s{h}, 2\ns_add_u32 s{T+2}, s{T+2}, s{w}")
        a(f"s_lshl_b32 s{T}, s{T+2}, 11")
        for p in range(2): sadd64(a, self.sINB[p], S_WS, T, OFF_PART + p*262144)
        a(f"v_bfe_u32 v{T0}, v{l}, 4, 1\nv_lshlrev_b32 v{T0}, 5, v{T0}\nv_and_b32 v{T1}, 7, v{l}\nv_lshl_add_u32 v{T0}, v{T1}, 2, v{T0}")
        a(f"s_lshl_b32 s{T}, s{T+2}, 6\nv_add_u32 v{MST}, s{T}, v{T0}")
        a(f"s_lshl_b32 s{T}, s{w}, 12\ns_add_u32 s{T}, s{T}, {L_W}\nv_add_u32 v{WL}, s{T}, v{L16}\nv_add_u32 v{WL2}, 65536, v{WL}")
        for p in range(2):
            sadd64(a, self.sMEM[p], S_WS, imm=OFF_MEM + p*8192)
            sadd64(a, self.sPART[p], S_WS, imm=OFF_PART + p*262144)
            sadd64(a, self.sPART2[p], S_WS, imm=OFF_PART + p*262144 + 32768)
        a(f"s_lshl_b32 s{T}, s{h}, 19\ns_lshl_b32 s{T+1}, s{w}, 11\ns_add_u32 s{T}, s{T}, s{T+1}")
        sadd64(a, self.sKX, S_WS, T, OFF_KXF); sadd64(a, self.sVX, S_WS, T, OFF_VXF)
        a(f"s_mul_i32 s{T}, s{h}, {65*4096}\ns_lshl_b32 s{T+1}, s{w}, 10\ns_add_u32 s{T}, s{T}, s{T+1}")
        sadd64(a, self.sKVM, S_WS, T, OFF_KVM + 4096)
        a(f"v_lshlrev_b32 v{FAD}, 7, v{l}\nv_add_u32 v{FAD}, {OFF_FKV}, v{FAD}")
        a(f"s_lshl_b32 s{self.sKXL}, s{w}, 11\ns_add_u32 s{self.sKXL}, s{self.sKXL}, {L_KX}")
        c = (128 ** -0.5) * math.log2(math.e)
        a(f"s_mov_b32 s{self.sC}, 0x{struct.unpack('<I', struct.pack('<f', c))[0]:08x}")
        a(f"s_mov_b32 s{self.sC2}, s{self.sC}\ns_mov_b32 s{self.sC2+1}, s{self.sC}")
        a(f"s_mov_b32 s{self.sONES}, 0x3f803f80\ns_mov_b32 s{self.sONES+1}, 0x3f803f80")
        a(f"v_and_b32 v{T0}, 4, v{l}\nv_cmp_ne_u32 s[{self.sN4}:{self.sN4+1}], 0, v{T0}")
        a(f"s_cmp_eq_u32 s{w}, 0\ns_cselect_b32 s{self.sW0}, 1, 0\ns_mov_b32 s{self.sW0+1}, 0")
        a(f"s_lshl_b32 s{self.sFMA}, s{h}, 7\ns_lshl_b32 s{T}, s{w}, 2\ns_add_u32 s{self.sFMA}, s{self.sFMA}, s{T}\ns_add_u32 s{self.sFMA}, s{self.sFMA}, {OFF_FM - 4096}")
        sadd64(a, self.sFMB, S_WS, self.sFMA)
        a(f"v_and_b32 v{T0}, 1, v{l}\nv_lshlrev_b32 v{T0}, 4, v{T0}\nv_mov_b32 v{T1}, 0x3f80\nv_lshlrev_b32 v{T1}, v{T0}, v{T1}\nv_and_b32 v{T0}, 14, v{l}")
        for r in range(4):
            a(f"v_cmp_eq_u32 vcc, {2*r}, v{T0}\nv_cndmask_b32 v{SEL+r}, 0, v{T1}, vcc")
        a(f"v_cmp_le_u32 vcc, 32, v{l}\nv_mov_b32 v{T0}, 0xf149f2ca")
        for r in range(4): a(f"v_cndmask_b32 v{CM+r}, 0, v{T0}, vcc")
        for r in range(4): a(f"v_mov_b32 v{PKV+r}, 0")

    def lslot_addr(self, slot, off):
        return (WL, slot*16384 + off) if slot < 4 else (WL2, (slot-4)*16384 + off)

    def early_issue(self):
        a = self.a; h, w, T = S_RANK, S_WAVE, self.sT
        a(f"v_lshlrev_b32 v{T0}, 4, v0")
        a(f"s_lshl_b32 s{T+3}, s{w}, 12\ns_lshl_b32 s{T+2}, s{h}, 17\ns_add_u32 s{T+2}, s{T+2}, s{T+3}\ns_add_u32 m0, s{T+3}, {L_W}")
        sadd64(a, T, S_WO, T+2)
        for n in range(8):
            if n:
                a("s_add_u32 m0, m0, 16384")
                sadd64(a, T, T, imm=16384)
            for i in range(4):
                a(f"global_load_lds_dwordx4 v{T0}, s[{T}:{T+1}] offset:{i*1024}")

    def load_weights(self):
        a = self.a; h, w, T, l = S_RANK, S_WAVE, self.sT, LANE
        VQ, VTQ, VTQ2, VTO, VTO2 = MA+8, MA+9, MA+10, MA+11, MA+12
        TMP, OTMP = WB, XF
        a(f"v_lshrrev_b32 v{T0}, 4, v{l}\nv_and_b32 v{T1}, 15, v{l}\nv_lshlrev_b32 v{T1}, 4, v{T1}\nv_lshl_add_u32 v{VQ}, v{T0}, 13, v{T1}")
        a(f"s_lshl_b32 s{T}, s{h}, 8\ns_lshl_b32 s{T+1}, s{w}, 17\ns_add_u32 s{T}, s{T}, s{T+1}\nv_add_u32 v{VQ}, s{T}, v{VQ}")
        a(f"v_bfe_u32 v{T0}, v{l}, 3, 1\nv_lshlrev_b32 v{VTQ}, 5, v{T0}\nv_and_b32 v{T0}, 3, v{l}\nv_lshl_add_u32 v{VTQ}, v{T0}, 3, v{VTQ}")
        a(f"s_lshl_b32 s{T}, s{w}, 8\ns_add_u32 s{T}, s{T}, {L_W}\nv_add_u32 v{VTO}, s{T}, v{VTQ}")
        a(f"s_lshl_b32 s{T}, s{w}, 6\ns_add_u32 s{T}, s{T}, {L_W}\nv_add_u32 v{VTQ}, s{T}, v{VTQ}")
        a(f"v_bfe_u32 v{T0}, v{l}, 2, 1\nv_lshl_add_u32 v{VTQ}, v{T0}, 13, v{VTQ}\nv_lshl_add_u32 v{VTO}, v{T0}, 10, v{VTO}")
        a(f"v_bfe_u32 v{T0}, v{l}, 5, 1\nv_lshl_add_u32 v{VTQ}, v{T0}, 10, v{VTQ}\nv_lshl_add_u32 v{VTO}, v{T0}, 12, v{VTO}")
        a(f"v_bfe_u32 v{T0}, v{l}, 4, 1\nv_lshl_add_u32 v{VTQ}, v{T0}, 9, v{VTQ}\nv_lshl_add_u32 v{VTO}, v{T0}, 14, v{VTO}")
        a(f"v_add_u32 v{VTQ2}, 65536, v{VTQ}\nv_add_u32 v{VTO2}, 65536, v{VTO}")
        a(f"s_lshl_b32 s{T+3}, s{w}, 12\ns_add_u32 s{T+3}, s{T+3}, {L_W}")
        items = [('O', i) for i in range(8)] + [b for b in self.regblocks if b[0] != 'o'] + [b for b in self.lds_blocks if b[0] != 'o']
        assert len(items) == 32
        def issue(n):
            mat, idx = items[n]; slot = n % 8
            if mat == 'O':
                sadd64(a, T, S_WO, T+2, idx*16384)
                a(f"s_add_u32 m0, s{T+3}, {slot*16384}\ns_nop 0")
                for i in range(4):
                    a(f"global_load_lds_dwordx4 v{L16}, s[{T}:{T+1}] offset:{i*1024}")
            else:
                base = {'q': S_WQ, 'k': S_WK, 'v': S_WV}[mat]
                sadd64(a, T, base, imm=idx << 19)
                for i in range(4):
                    a(f"s_add_u32 m0, s{T+3}, {slot*16384 + i*1024}")
                    if i: sadd64(a, T, T, imm=32768)
                    else: a("s_nop 0")
                    a(f"global_load_lds_dwordx4 v{VQ}, s[{T}:{T+1}]")
        def consume(n):
            mat, idx = items[n]; slot = n % 8
            if mat == 'O':
                if idx % 2 == 0: return False
                ko = idx // 2; s0 = slot - 1
                va, sb = (VTO, s0*16384) if s0 < 4 else (VTO2, (s0-4)*16384)
                for j in range(4):
                    k, base = self.loc[('o', (ko // 2)*4 + j)]
                    if k == 'l': k, base = 'v', OTMP
                    for rho in range(4):
                        r = base + 8*(ko % 2) + 2*rho
                        a(f"ds_read_b64_tr_b16 {k}[{r}:{r+1}], v{va} offset:{sb + (8*(rho >> 1) + 2*(rho & 1))*1024 + j*64}")
                a("s_waitcnt lgkmcnt(0)")
                return True
            k, base = self.loc[(mat, idx)]
            isl = k == 'l'
            if isl:
                assert base == slot, (base, slot)
                k, base = 'v', TMP
            va, sb = (VTQ, slot*16384) if slot < 4 else (VTQ2, (slot-4)*16384)
            for b in range(2):
                for rho in range(4):
                    r = base + 8*b + 2*rho
                    a(f"ds_read_b64_tr_b16 {k}[{r}:{r+1}], v{va} offset:{sb + (16*b + 8*(rho >> 1) + (rho & 1))*256}")
            a("s_waitcnt lgkmcnt(0)")
            if isl:
                a("s_barrier")
                for q in range(4):
                    r_, o_ = self.lslot_addr(slot, q*1024)
                    a(f"ds_write_b128 v{r_}, v[{TMP+4*q}:{TMP+4*q+3}] offset:{o_}")
                a("s_waitcnt lgkmcnt(0)")
            return True
        issued = 8; consumed = 0
        for n in range(32):
            a(f"s_waitcnt vmcnt({4*(issued - n - 1) + ((13 if self.CODEPF else 12) if n > 28 else 0) + (6 if n < 8 else 0)})")
            a("s_barrier")
            while issued < 32 and issued - 8 < consumed:
                issue(issued); issued += 1
            if n == 9: self.comm_init2()
            if n == 18: self.group_arrive(self.dbg_off)
            if consume(n): consumed = n + 1
            if n == 10 and self.flags:
                a(f"v_mov_b32 v{T0}, {DBG_INIT}")
                a(f"global_load_dword v{MA+2}, v{T0}, s[{S_DBG}:{S_DBG+1}] sc1")
            if n == 20:
                if self.flags:
                    ok = a.newlabel('Lini')
                    a(f"v_readfirstlane_b32 s{T}, v{MA+2}\ns_cmp_ge_u32 s{T}, 8\ns_cbranch_scc1 {ok}")
                    self.wait_init(a, T0, T1, T)
                    a.label(ok)
                    a(f"global_load_dword v{FLG}, v{FAD}, s[{S_WS}:{S_WS+1}] sc1")
            if n == 28:
                if self.flags:
                    a(f"v_cmp_le_u32 s[{self.sRDY}:{self.sRDY+1}], 32, v{FLG}")
                    a(f"s_ff0_i32_b64 s{self.sUPTO}, s[{self.sRDY}:{self.sRDY+1}]")
                    self.ready_check(0)
                for g in self.prefetch_groups(0):
                    for x in g: a(x)
                a(f"v_mov_b32 v{T0}, {self.dbg_off}")
                a(f"global_load_dwordx2 v[{MA}:{MA+1}], v{T0}, s[{S_DBG}:{S_DBG+1}] sc1")
                if self.flags:
                    a(f"global_load_dword v{FLG}, v{FAD}, s[{S_WS}:{S_WS+1}] sc1")
                else:
                    a(f"global_load_dword v{FLG}, v{L16}, s[{S_WS}:{S_WS+1}] sc1")
                if self.CODEPF:
                    a(f"s_getpc_b64 s[{self.sPC}:{self.sPC+1}]")
                    a.label("Lpcref")
                    a(f"s_lshl_b32 s{T}, s{w}, 13\ns_add_u32 s{T}, s{T}, Lrec_local-Lpcref\nv_lshlrev_b32 v{T0}, 3, v{L16}\nv_add_u32 v{T0}, s{T}, v{T0}")
                    a(f"global_load_dword v{MA+16}, v{T0}, s[{self.sPC}:{self.sPC+1}]")
                for p in range(2):
                    a(f"global_load_dwordx4 v[{MA+16}:{MA+19}], v{L16}, s[{self.sINB[p]}:{self.sINB[p]+1}] sc1")
                    a(f"global_load_dwordx4 v[{MA+16}:{MA+19}], v{L16}, s[{self.sINB[p]}:{self.sINB[p]+1}] offset:1024 sc1")
                    a(f"global_load_dword v{MA+16}, v{MST}, s[{self.sMEM[p]}:{self.sMEM[p]+1}] sc1")
        for q in range(4):
            r_, o_ = self.lslot_addr(self.loc[('o', 0)][1], q*1024)
            a(f"ds_write_b128 v{r_}, v[{OTMP+4*q}:{OTMP+4*q+3}] offset:{o_}")
        a("s_waitcnt vmcnt(0) lgkmcnt(0)")
        ok = a.newlabel('Lgrp')
        a(f"v_readfirstlane_b32 s{T}, v{MA}\ns_cmp_ge_u32 s{T}, 32\ns_cbranch_scc1 {ok}")
        self.group_wait(self.dbg_off)
        a.label(ok)
        a(f"v_readfirstlane_b32 s{T}, v{MA+1}\ns_bcnt1_i32_b32 s{S_LOCAL}, s{T}")

    def comm_init(self):
        a = self.a; T, l, R = self.sT, LANE, MA
        for i in range(4): a(f"v_mov_b32 v{R+i}, -1")
        for p in range(2):
            for i in range(2):
                a(f"global_store_dwordx4 v{L16}, v[{R}:{R+3}], s[{self.sINB[p]}:{self.sINB[p]+1}] offset:{i*1024} sc1")
        a(f"s_lshl_b32 s{T+2}, s{S_RANK}, 2\ns_add_u32 s{T+2}, s{T+2}, s{S_WAVE}")
        a(f"s_lshr_b32 s{T}, s{T+2}, 4\ns_lshl_b32 s{T}, s{T}, 7")
        a(f"s_bfe_u32 s{T+1}, s{T+2}, 0x10003\ns_lshl_b32 s{T+1}, s{T+1}, 5\ns_add_u32 s{T}, s{T}, s{T+1}")
        a(f"s_bfe_u32 s{T+1}, s{T+2}, 0x20001\ns_lshl_b32 s{T+1}, s{T+1}, 3\ns_add_u32 s{T}, s{T}, s{T+1}")
        a(f"s_and_b32 s{T+1}, s{T+2}, 1\ns_lshl_b32 s{T+1}, s{T+1}, 12\ns_add_u32 s{T}, s{T}, s{T+1}")
        a(f"v_bfe_u32 v{T0}, v{l}, 4, 1\nv_lshlrev_b32 v{T0}, 11, v{T0}\nv_bfe_u32 v{T1}, v{l}, 2, 1\nv_lshl_add_u32 v{T0}, v{T1}, 10, v{T0}")
        a(f"v_and_b32 v{T1}, 3, v{l}\nv_lshl_add_u32 v{T0}, v{T1}, 1, v{T0}\nv_add_u32 v{T0}, s{T}, v{T0}")
        a(f"global_load_ushort v{R+4}, v{T0}, s[{S_MEM0}:{S_MEM0+1}]")
        a(f"global_load_ushort v{R+5}, v{T0}, s[{S_MEM0}:{S_MEM0+1}] offset:64")

    def comm_init2(self):
        a = self.a; R = MA
        a(f"v_lshl_or_b32 v{R+4}, v{R+5}, 16, v{R+4}\nv_min_u32 v{R+4}, -2, v{R+4}")
        a("s_mov_b64 exec, 0x00ff00ff")
        a(f"global_store_dword v{MST}, v{R+4}, s[{self.sMEM[0]}:{self.sMEM[0]+1}] sc1")
        a(f"global_store_dword v{MST}, v{R}, s[{self.sMEM[1]}:{self.sMEM[1]+1}] sc1")
        a("s_mov_b64 exec, -1")

    def announce(self, off):
        a = self.a; T = self.sT
        a(f"s_getreg_b32 s{T}, hwreg(HW_REG_XCC_ID)\ns_and_b32 s{T}, s{T}, 15\ns_lshl_b32 s{T}, 1, s{T}")
        a(f"v_mov_b32 v{T0}, {off+4}\nv_mov_b32 v{T1}, s{T}")
        a(f"s_mov_b64 exec, s[{self.sW0}:{self.sW0+1}]")
        a(f"global_atomic_or v{T0}, v{T1}, s[{S_DBG}:{S_DBG+1}]")
        a("s_mov_b64 exec, -1")

    def group_arrive(self, off):
        a = self.a
        a(f"v_mov_b32 v{T0}, {off}\nv_mov_b32 v{T1}, 1")
        a(f"s_mov_b64 exec, s[{self.sW0}:{self.sW0+1}]")
        a(f"global_atomic_add v{T0}, v{T1}, s[{S_DBG}:{S_DBG+1}]")
        a("s_mov_b64 exec, -1")

    def group_wait(self, off):
        a = self.a; T = self.sT
        l0, l1 = a.newlabel('Lgb'), a.newlabel('Lgb')
        a(f"v_mov_b32 v{T0}, {off}")
        a.label(l0)
        a(f"global_load_dwordx2 v[{MA}:{MA+1}], v{T0}, s[{S_DBG}:{S_DBG+1}] sc1")
        a(f"s_add_u32 s{self.sSPIN}, s{self.sSPIN}, 1\ns_cmp_gt_u32 s{self.sSPIN}, 0x100000\ns_cbranch_scc1 {l1}")
        a(f"s_waitcnt vmcnt(0)\nv_readfirstlane_b32 s{T}, v{MA}")
        a(f"s_cmp_lt_u32 s{T}, 32\ns_cbranch_scc1 {l0}")
        a.label(l1)
        a(f"s_waitcnt vmcnt(0)\nv_readfirstlane_b32 s{T}, v{MA+1}")
        a(f"s_bcnt1_i32_b32 s{S_LOCAL}, s{T}")

    def ready_slow(self, entry, back, want_next):
        a = self.a; R = self.sRDY
        a.label(entry)
        again = a.newlabel('Lrdy')
        a.label(again)
        a(f"global_load_dword v{FLG}, v{FAD}, s[{S_WS}:{S_WS+1}] sc1")
        a(f"s_add_u32 s{self.sSPIN}, s{self.sSPIN}, 1\ns_cmp_gt_u32 s{self.sSPIN}, 0x100000\ns_cbranch_scc1 {back}")
        a(f"s_waitcnt vmcnt(0)\nv_cmp_le_u32 s[{R}:{R+1}], 32, v{FLG}")
        a(f"s_ff0_i32_b64 s{self.sUPTO}, s[{R}:{R+1}]")
        a(f"s_add_u32 s{self.sT}, s{self.sSTEP}, {want_next}\ns_cmp_lt_u32 s{self.sT}, s{self.sUPTO}\ns_cbranch_scc0 {again}")
        a(f"s_branch {back}")

    def ready_check(self, want_next):
        if not self.flags: return
        a = self.a
        entry, back = a.newlabel('Lrs'), a.newlabel('Lrb')
        a(f"s_add_u32 s{self.sT}, s{self.sSTEP}, {want_next}\ns_cmp_lt_u32 s{self.sT}, s{self.sUPTO}\ns_cbranch_scc0 {entry}")
        a.label(back)
        self.ool.append(lambda: self.ready_slow(entry, back, want_next))

    def prefetch_groups(self, p):
        ld = " sc1" if self.flags else ""
        return [[f"s_add_u32 m0, s{self.sKXL}, {p*8192}", f"global_load_dwordx4 v[{VX+8*p}:{VX+8*p+3}], v{L16}, s[{self.sVX}:{self.sVX+1}]{ld}"],
                [f"global_load_lds_dwordx4 v{L16}, s[{self.sKX}:{self.sKX+1}]{ld}"],
                [f"global_load_lds_dwordx4 v{L16}, s[{self.sKX}:{self.sKX+1}] offset:1024{ld}"],
                [f"global_load_dwordx4 v[{VX+8*p+4}:{VX+8*p+7}], v{L16}, s[{self.sVX}:{self.sVX+1}] offset:1024{ld}"],
                [f"s_add_u32 s{self.sKX}, s{self.sKX}, 8192", f"s_addc_u32 s{self.sKX+1}, s{self.sKX+1}, 0"],
                [f"s_add_u32 s{self.sVX}, s{self.sVX}, 8192", f"s_addc_u32 s{self.sVX+1}, s{self.sVX+1}, 0"]]
    def pub_groups(self):
        g = [[f"global_store_dwordx4 v{L16}, v[{PKV}:{PKV+3}], s[{self.sKVM}:{self.sKVM+1}] sc1"],
             [f"s_add_u32 s{self.sKVM}, s{self.sKVM}, 4096", f"s_addc_u32 s{self.sKVM+1}, s{self.sKVM+1}, 0"]]
        return g
    def flag_groups(self):
        f = self.sFMB
        return [["s_mov_b64 exec, 1", f"global_store_dword v{L16}, v{IDX}, s[{f}:{f+1}] sc1", "s_mov_b64 exec, -1"],
                [f"s_add_u32 s{f}, s{f}, 4096", f"s_addc_u32 s{f+1}, s{f+1}, 0"]]

    def smf(self, acc, afrag, bfrag):
        self.a(f"v_smfmac_f32_16x16x64_bf16 v[{acc}:{acc+3}], v[{afrag}:{afrag+3}], {bfrag}, v{IDX}")
    def frag(self, mat, sig):
        k, base = self.loc[(mat, sig // 2)]
        return f"{k}[{base+8*(sig%2)}:{base+8*(sig%2)+7}]"

    def step(self, p, fail, done, wv=None):
        a = self.a
        a.auto_lgkm = True; a.ds_out = []
        q = 1 - p
        ACC = {'q': QA, 'k': KA, 'v': VA}
        K = list(range(16)) if wv is None else [(4*wv + i) % 16 for i in range(16)]
        seq = []
        for s in K[:8]: seq += [('q', s), ('v', s), ('k', s)]
        for s in K[8:]: seq += [('q', s), ('k', s)]
        seq += [('v', K[i]) for i in (8, 9, 10, 12, 13, 11, 14, 15)]
        lq = [x for x in seq if self.loc[(x[0], x[1] // 2)][0] == 'l']
        assert len(lq) == 14
        def lread(n):
            if n >= len(lq): return []
            m, s = lq[n]; buf = WB + 8*(n % 3); slot = self.loc[(m, s // 2)][1]
            r_, o_ = self.lslot_addr(slot, (s % 2)*2048)
            return [f"ds_read_b128 v[{buf}:{buf+3}], v{r_} offset:{o_}", f"ds_read_b128 v[{buf+4}:{buf+7}], v{r_} offset:{o_+1024}"]
        abuf = {}
        def aread(s, b):
            abuf[s] = MA + 4*b
            return f"ds_read_b128 v[{MA+4*b}:{MA+4*b+3}], v{DUP} offset:{L_MEMX + s*512}"
        kxdst = {3: QA}
        def kx_read(kk):
            d = kxdst[kk]
            return [f"ds_read_b128 v[{d+4*t}:{d+4*t+3}], v{L16} offset:{L_KX + p*8192 + t*4096 + kk*1024}" for t in range(2)]
        dsq = []
        def gemm(i, defer=False):
            m, s = seq[i]
            assert all(d > i for d, _ in dsq), (i, dsq)
            if (m, s) in lq:
                n = lq.index((m, s)); buf = WB + 8*(n % 3)
                self.smf(ACC[m], abuf[s], f"v[{buf}:{buf+7}]")
                for x in lread(n + 3):
                    if defer: dsq.append((seq.index(lq[n + 3]), x))
                    else: a(x)
                if n + 3 >= len(lq):
                    kk = n + 3 - len(lq)
                    kxdst[kk] = buf
                    for x in kx_read(kk): dsq.append((100 + kk, x))
            else:
                self.smf(ACC[m], abuf[s], self.frag(m, s))
        def qaread(pos, b):
            dsq.append((seq.index(('q', K[pos])), aread(K[pos], b)))
        def ds_one():
            if dsq:
                dsq.sort(key=lambda t: t[0])
                a(dsq.pop(0)[1])
        def zero(r, n): return [f"v_mov_b64 v[{r+2*i}:{r+2*i+1}], 0" for i in range(n // 2)]
        def prework(part):
            if part == 0:
                for n in range(3):
                    for x in lread(n): a(x)
            else:
                for x in zero(QA, 12): a(x)
                a(f"v_mov_b64 v[{XF}:{XF+1}], -1\nv_mov_b64 v[{XF+2}:{XF+3}], -1")
        self._prework_text = sum([lread(n) for n in range(3)], []) + zero(QA, 12) + [f"v_mov_b64 v[{XF}:{XF+1}], -1", f"v_mov_b64 v[{XF+2}:{XF+3}], -1"]
        nool0 = len(self.ool)
        loopA = a.newlabel('LlA')
        PA = XF + 8
        self.nstamp('pre')
        R = XF
        PA2 = MA + 24
        def loadsA(d):
            for j in range(2):
                a(f"global_load_dwordx4 v[{d+4*j}:{d+4*j+3}], v{MX0}, s[{self.sMEM[p]}:{self.sMEM[p]+1}] offset:{j*1024} sc1")
        def useA(d):
            a(f"ds_write_b128 v{MX0}, v[{d}:{d+3}] offset:{L_MEMX}")
            a(f"ds_write_b128 v{MX0}, v[{d+4}:{d+7}] offset:{L_MEMX+1024}")
            a(f"v_max3_u32 v{T0}, v{d}, v{d+1}, v{d+2}\nv_max3_u32 v{T1}, v{d+3}, v{d+4}, v{d+5}")
            a(f"v_max3_u32 v{T0}, v{T0}, v{d+6}, v{d+7}\nv_max_u32 v{T0}, v{T0}, v{T1}\nv_cmp_eq_u32 vcc, -1, v{T0}")
        okA, slowA = a.newlabel('LokA'), a.newlabel('LslA')
        for x in self.PA0: a(x)
        rst = [f"global_store_dwordx4 v{L16}, v[{R}:{R+3}], s[{self.sINB[q]}:{self.sINB[q]+1}]{self.flavor}",
               f"global_store_dwordx4 v{L16}, v[{R}:{R+3}], s[{self.sINB[q]}:{self.sINB[q]+1}] offset:1024{self.flavor}"]
        loadsA(PA)
        if self.RSTA:
            for x in rst: a(x)
        for x in self.PA1: a(x)
        loadsA(PA2)
        a(f"s_waitcnt vmcnt({4 if self.RSTA else 2})")
        useA(PA)
        a(f"s_cbranch_vccnz {slowA}")
        a.label(okA)
        def rA():
            a.label(slowA)
            for (x, y) in ((PA, PA2), (PA2, PA)):
                a("s_mov_b64 exec, vcc")
                loadsA(x)
                a("s_mov_b64 exec, -1\ns_waitcnt vmcnt(2)")
                useA(y)
                a(f"s_cbranch_vccz {okA}")
            a(f"s_add_u32 s{self.sSPIN}, s{self.sSPIN}, 1\ns_cmp_lt_u32 s{self.sSPIN}, 0x80000\ns_cbranch_scc1 {slowA}")
            a(f"s_branch {okA}")
        self.ool.append(rA)
        self.nstamp('pollA')
        start = 0
        if wv is None:
            a("s_waitcnt lgkmcnt(0)\ns_barrier")
            self.nstamp('b1')
            for i in range(4): a(aread(K[i], i))
        else:
            a.ds_out = []
            for i in range(4): a(aread(K[i], i))
            for i in range(self.OWN1): gemm(i)
            start = self.OWN1
            if start == 0: a("s_waitcnt lgkmcnt(4)")
            a("s_barrier")
            self.nstamp('b1')
        mrst = ["s_mov_b64 exec, 0x00ff00ff", f"global_store_dword v{MST}, v{R}, s[{self.sMEM[q]}:{self.sMEM[q]+1}]{self.flavor}", "s_mov_b64 exec, -1"]
        if wv is None:
            a("s_waitcnt vmcnt(0)")
            for i in range(4, 8): a(aread(K[i], i))
            for x in mrst: a(x)
        chk = False
        F = self.prefetch_groups(q)
        nslow = 7
        if self.flags:
            F += self.flag_groups(); nslow = 8
            if chk:
                F += [[f"s_not_b64 exec, s[{self.sRDY}:{self.sRDY+1}]", "s_or_b32 exec_hi, exec_hi, 0x80000000", f"global_load_dword v{FLG}, v{FAD}, s[{S_WS}:{S_WS+1}] sc1", "s_mov_b64 exec, -1"]]; nslow = 9
        if self.RSTA: nslow -= 2
        else: F += [[]]*(2*(wv or 0)) + [[rst[0]]] + [[]]*7 + [[rst[1]]]
        if wv is not None:
            qaread(4, 4); qaread(5, 5)
            F = [[], [], [], [], [], ["s_waitcnt vmcnt(0)"], mrst] + F
            if chk:
                F[1] = [f"v_cmp_le_u32 s[{self.sRDY}:{self.sRDY+1}], 32, v{FLG}"]
                F[3] = 'ready'
        elif chk:
            a(f"v_cmp_le_u32 s[{self.sRDY}:{self.sRDY+1}], 32, v{FLG}")
            a(f"s_ff0_i32_b64 s{self.sUPTO}, s[{self.sRDY}:{self.sRDY+1}]")
            self.ready_check(2)
        for i in range(40):
            gemm(i, defer=True)
            if i < 24 and i % 3 == 2: qaread(i // 3 + 8, i // 3)
            if wv is not None and i == 6: qaread(6, 6); qaread(7, 7)
            g = F.pop(0) if F else []
            if g == 'ready':
                a(f"s_ff0_i32_b64 s{self.sUPTO}, s[{self.sRDY}:{self.sRDY+1}]")
                self.ready_check(2); g = []
            if len(g) < 3: ds_one()
            for x in g: a(x)
            self.nstamp(f'g{i}')
        assert not F
        self.nstamp('qk_end')
        def xread(kk):
            for rho in range(2):
                d = XF + 4*kk + 2*rho
                a(f"ds_read_b64_tr_b16 v[{d}:{d+1}], v{QKR} offset:{L_QK + kk*1024 + rho*512}")
        gemm(40); ds_one(); gemm(41); ds_one()
        a(f"v_cvt_pk_bf16_f32 v{T0}, v{QA}, v{QA+1}\nv_cvt_pk_bf16_f32 v{T1}, v{QA+2}, v{QA+3}")
        a(f"v_cvt_pk_bf16_f32 v{PKV}, v{KA}, v{KA+1}\nv_cvt_pk_bf16_f32 v{PKV+1}, v{KA+2}, v{KA+3}")
        a(f"ds_write_b128 v{QKW}, v[{T0}:{T0+3}]")
        SX0, SX1, SM = MA, MA + 4, MA + 8
        PX, PM, ONES = XF, XF + 4, MA + 12
        VM0, VM1 = VA, VA + 2
        def smf1(kk, first, which):
            kx = kxdst[kk]; X = XF + 4*kk
            D, A_, c0 = ((SM, X, f"v[{CM}:{CM+3}]"), (SX0, kx, "0"), (SX1, kx + 4, "0"))[which]
            a(f"v_mfma_f32_16x16x32_bf16 v[{D}:{D+3}], v[{A_}:{A_+3}], v[{X}:{X+3}], " + (c0 if first else f"v[{D}:{D+3}]"))
        nafter = 0
        kks = [0, 1, 2, 3]
        if wv is not None:
            xread(wv); nafter = 2
            kks = [wv] + [k for k in kks if k != wv]
        for x in kx_read(3): dsq.append((103, x))
        pre = (42, 43, 44) if wv is None else tuple(range(42, 42 + self.NPRE))
        for i in pre:
            gemm(i)
            if dsq: ds_one(); nafter += 1
        self.nstamp('b2pre')
        a(f"s_waitcnt lgkmcnt({nafter})\ns_barrier")
        self.nstamp('b2')
        for kk in kks:
            if kk != wv: xread(kk)
        for i in range(pre[-1] + 1, 48):
            gemm(i); ds_one()
        while dsq: ds_one()
        self.nstamp('v_end')
        pg = self.pub_groups()
        G = [[f"v_mov_b64 v[{ONES}:{ONES+1}], s[{self.sONES}:{self.sONES+1}]", f"v_mov_b64 v[{ONES+2}:{ONES+3}], s[{self.sONES}:{self.sONES+1}]"], [],
             [f"v_cvt_pk_bf16_f32 v{PKV+2}, v{VA}, v{VA+1}", f"v_cvt_pk_bf16_f32 v{PKV+3}, v{VA+2}, v{VA+3}"],
             [f"v_mov_b64 v[{VM0}:{VM0+1}], v[{PKV+2}:{PKV+3}]", f"v_mov_b64 v[{VM1}:{VM1+1}], v[{PKV+2}:{PKV+3}]"], [],
             [f"v_permlane32_swap_b32 v{VM0}, v{VM1}"], [f"v_permlane32_swap_b32 v{VM0+1}, v{VM1+1}"], [], [], [], [], pg[1]]
        G[7 + (wv or 0)] = pg[0]
        n = 0
        for kk in kks:
            for which in range(3):
                smf1(kk, kk == kks[0], which)
                for x in G[n]: a(x)
                n += 1
        if p == 1:
            a(f"s_cmp_ge_u32 s{self.sSTEP}, 63\ns_cbranch_scc1 {done}")
        OL = WB
        oslot = self.loc[('o', 0)][1]
        olr = []
        for i in range(4):
            r_, o_ = self.lslot_addr(oslot, i*1024)
            olr.append(f"ds_read_b128 v[{OL+4*i}:{OL+4*i+3}], v{r_} offset:{o_}")
        a(olr[0])
        self.nstamp('s_end')
        M, TT = T0, T1
        S = [SX0+i for i in range(4)] + [SX1+i for i in range(4)] + [SM+i for i in range(4)]
        OUT = MA + 16
        zo = zero(OUT, 16)
        a(f"v_max3_f32 v{M}, v{S[8]}, v{S[9]}, v{S[10]}\nv_max3_f32 v{M}, v{M}, v{S[11]}, v{S[0]}")
        a(f"v_max3_f32 v{TT}, v{S[1]}, v{S[2]}, v{S[3]}\nv_max3_f32 v{M}, v{M}, v{S[4]}, v{S[5]}")
        a(f"v_max3_f32 v{TT}, v{TT}, v{S[6]}, v{S[7]}\nv_max_f32 v{M}, v{M}, v{TT}")
        a(f"v_mov_b32 v{TT}, v{M}")
        a(zo[0]); a(zo[1]); a(olr[1])
        a(f"v_permlane32_swap_b32 v{M}, v{TT}\nv_max_f32 v{M}, v{M}, v{TT}")
        a(f"v_mov_b32 v{TT}, v{M}")
        a(zo[2]); a(zo[3]); a(olr[2])
        a(f"v_permlane16_swap_b32 v{M}, v{TT}\nv_max_f32 v{M}, v{M}, v{TT}")
        a(f"v_mul_f32 v{M}, s{self.sC}, v{M}")
        pkf = lambda r: f"v_pk_fma_f32 v[{r}:{r+1}], v[{r}:{r+1}], s[{self.sC2}:{self.sC2+1}], v[{M}:{M+1}] op_sel_hi:[1,1,0] neg_lo:[0,0,1] neg_hi:[0,0,1]"
        for r in S[0:8:2]: a(pkf(r))
        for r in S[:8]: a(f"v_exp_f32 v{r}, v{r}")
        for r in S[8:12:2]: a(pkf(r))
        for i in range(4): a(f"v_cvt_pk_bf16_f32 v{PX+i}, v{S[2*i]}, v{S[2*i+1]}")
        OT0, OT1 = QA, KA
        LLX = SX0
        V_ = VX + 8*p
        self.nstamp('sm_end')
        a(f"v_exp_f32 v{S[8]}, v{S[8]}")
        a(f"v_mfma_f32_16x16x32_bf16 v[{LLX}:{LLX+3}], v[{ONES}:{ONES+3}], v[{PX}:{PX+3}], 0")
        a(olr[3])
        a(f"v_exp_f32 v{S[9]}, v{S[9]}")
        a(f"v_mfma_f32_16x16x32_bf16 v[{OT0}:{OT0+3}], v[{V_}:{V_+3}], v[{PX}:{PX+3}], 0")
        a(f"v_exp_f32 v{S[10]}, v{S[10]}")
        a(f"v_mfma_f32_16x16x32_bf16 v[{OT1}:{OT1+3}], v[{V_+4}:{V_+7}], v[{PX}:{PX+3}], 0")
        a(f"v_exp_f32 v{S[11]}, v{S[11]}")
        a(f"v_cvt_pk_bf16_f32 v{PM}, v{S[8]}, v{S[9]}\nv_cvt_pk_bf16_f32 v{PM+1}, v{S[10]}, v{S[11]}")
        a(zo[4]); a(zo[5])
        a(f"v_mfma_f32_16x16x16_bf16 v[{LLX}:{LLX+3}], v[{ONES}:{ONES+1}], v[{PM}:{PM+1}], v[{LLX}:{LLX+3}]")
        a(zo[6]); a(zo[7])
        a(f"v_mfma_f32_16x16x16_bf16 v[{OT0}:{OT0+3}], v[{VM0}:{VM0+1}], v[{PM}:{PM+1}], v[{OT0}:{OT0+3}]")
        a(f"v_mfma_f32_16x16x16_bf16 v[{OT1}:{OT1+3}], v[{VM1}:{VM1+1}], v[{PM}:{PM+1}], v[{OT1}:{OT1+3}]")
        a(f"v_rcp_f32 v{M}, v{LLX}")
        a("s_mov_b32 exec_lo, 0xff00ff00\ns_mov_b32 exec_hi, 0xff00ff00")
        OP = WB + 16
        for i in (0, 2): a(f"v_pk_mul_f32 v[{OT0+i}:{OT0+i+1}], v[{OT0+i}:{OT0+i+1}], v[{M}:{M+1}] op_sel_hi:[1,0]")
        for i in range(2): a(f"v_cvt_pk_bf16_f32 v{OP+i}, v{OT0+2*i}, v{OT0+2*i+1}")
        for i in (0, 2): a(f"v_pk_mul_f32 v[{OT1+i}:{OT1+i+1}], v[{OT1+i}:{OT1+i+1}], v[{M}:{M+1}] op_sel_hi:[1,0]")
        for i in range(2): a(f"v_cvt_pk_bf16_f32 v{OP+2+i}, v{OT1+2*i}, v{OT1+2*i+1}")
        a(f"ds_write_b128 v{OW}, v[{OP}:{OP+3}]")
        a("s_mov_b64 exec, -1")
        OA = XF
        PK = MA
        def ofrag(j, ko):
            k, base = self.loc[('o', (ko // 2)*4 + j)]
            if k == 'l': k, base = 'v', OL
            return f"{k}[{base+8*(ko%2)}:{base+8*(ko%2)+7}]"
        def fin(tq):
            A0, A1 = OUT + 8*tq, OUT + 8*tq + 4
            sb = (self.sPART if tq == 0 else self.sPART2)[p]
            return [f"v_cvt_pk_bf16_f32 v{PK+4*tq+i}, v{A0+i}, v{A1+i}" for i in range(4)] + \
                   [f"global_store_dwordx4 v{PST}, v[{PK+4*tq}:{PK+4*tq+3}], s[{sb}:{sb+1}]{self.flavor}"]
        kos = [0, 1, 2, 3]
        if wv is not None:
            kos = [k for k in kos if k != wv]
            for i in range(4):
                a(f"v_mov_b32_dpp v{OP+i}, v{OP+i} row_ror:8 row_mask:0xf bank_mask:0x3")
            for j in range(2): self.smf(OUT + 4*j, OP, ofrag(j, wv))
        self.nstamp('b3pre')
        a(f"s_waitcnt vmcnt({nslow}) lgkmcnt(0)")
        self.nstamp('b3v')
        a("s_barrier")
        self.nstamp('b3')
        for ko in kos:
            a(f"ds_read_b128 v[{OA+4*ko}:{OA+4*ko+3}], v{DUP} offset:{L_O + ko*512}")
        self.nstamp('oex')
        if wv is not None:
            for j in range(2, 4): self.smf(OUT + 4*j, OP, ofrag(j, wv))
        for ko in kos:
            for j in range(2): self.smf(OUT + 4*j, OA + 4*ko, ofrag(j, ko))
        f0 = fin(0); n = 0
        for ko in kos:
            for j in range(2, 4):
                self.smf(OUT + 4*j, OA + 4*ko, ofrag(j, ko))
                if n >= 1:
                    for x in f0[:1]: a(x)
                    f0 = f0[1:]
                n += 1
        for x in f0 + fin(1): a(x)
        self.nstamp('ost')
        IN, RR = MA + 8, XF + 4
        loopB = a.newlabel('LlB')
        IN2 = MA + 24
        def loadsB(d):
            for i in range(2):
                a(f"global_load_dwordx4 v[{d+4*i}:{d+4*i+3}], v{L16}, s[{self.sINB[p]}:{self.sINB[p]+1}] offset:{i*1024} sc1")
        def useB(d):
            a(f"v_mfma_f32_16x16x32_bf16 v[{RR}:{RR+3}], v[{SEL}:{SEL+3}], v[{d}:{d+3}], 0")
            a(f"v_max3_u32 v{T0}, v{d}, v{d+1}, v{d+2}")
            a(f"v_mfma_f32_16x16x32_bf16 v[{RR}:{RR+3}], v[{SEL}:{SEL+3}], v[{d+4}:{d+7}], v[{RR}:{RR+3}]")
            a(f"v_max3_u32 v{T1}, v{d+3}, v{d+4}, v{d+5}\nv_max3_u32 v{T0}, v{T0}, v{d+6}, v{d+7}\nv_max_u32 v{T0}, v{T0}, v{T1}\nv_cmp_eq_u32 vcc, -1, v{T0}")
        def redB():
            for ror in (4, 8):
                for i in range(4): a(f"v_add_f32_dpp v{RR+i}, v{RR+i}, v{RR+i} row_ror:{ror} row_mask:0xf bank_mask:0xf")
            a(f"v_cvt_pk_bf16_f32 v{RR}, v{RR}, v{RR+1}\nv_cvt_pk_bf16_f32 v{RR+1}, v{RR+2}, v{RR+3}")
            a(f"v_cndmask_b32 v{RR}, v{RR}, v{RR+1}, s[{self.sN4}:{self.sN4+1}]")
        okB = a.newlabel('LokB')
        for x in self.PB0: a(x)
        if self.PWEARLY: prework(0)
        loadsB(IN)
        for x in self.PB1: a(x)
        loadsB(IN2)
        if not self.PWEARLY: prework(0)
        prework(1)
        a("s_waitcnt vmcnt(2)")
        self.nstamp('pollB')
        useB(IN)
        a(f"s_cbranch_vccnz {loopB}")
        a.label(okB)
        redB()
        def rB():
            a.label(loopB)
            for (x, y) in ((IN, IN2), (IN2, IN)):
                a("s_mov_b64 exec, vcc")
                loadsB(x)
                a("s_mov_b64 exec, -1\ns_waitcnt vmcnt(2)")
                useB(y)
                a(f"s_cbranch_vccz {okB}")
            a(f"s_add_u32 s{self.sSPIN}, s{self.sSPIN}, 1\ns_cmp_lt_u32 s{self.sSPIN}, 0x80000\ns_cbranch_scc1 {loopB}")
            a(f"s_branch {okB}")
        self.ool.append(rB)
        a("s_mov_b64 exec, 0x00ff00ff")
        a(f"global_store_dword v{MST}, v{RR}, s[{self.sMEM[q]}:{self.sMEM[q]+1}]{self.flavor}")
        a("s_mov_b64 exec, -1")
        self.nstamp('end')
        if self.stamps and self.PERSTEP:
            a("s_waitcnt lgkmcnt(0)")
            a(f"s_lshl_b32 s100, s{S_WAVE}, 6\ns_add_u32 s100, s100, s{self.sSTEP}\ns_lshl_b32 s100, s100, 3\ns_add_u32 s100, s100, 30720")
            a(f"s_sub_u32 s101, s{self.sST+14}, s{self.sST+12}")
            a(f"v_mov_b32 v{XF+8}, s{self.sST}\nv_mov_b32 v{XF+9}, s101\nv_mov_b32 v{T0}, s100")
            a(f"ds_write_b64 v{T0}, v[{XF+8}:{XF+9}]\ns_waitcnt lgkmcnt(0)")
        if self.stamps:
            a("s_waitcnt lgkmcnt(0)")
            for i in range(7):
                a(f"s_sub_u32 s{self.sT}, s{self.sST+2*i+2}, s{self.sST+2*i}\ns_cmp_ge_u32 s{self.sSTEP}, 21\ns_cselect_b32 s{self.sT}, s{self.sT}, 0\ns_add_u32 s{6+i}, s{6+i}, s{self.sT}")
        a(f"s_add_u32 s{self.sSTEP}, s{self.sSTEP}, 1")
        a.auto_lgkm = False
        self._nool = len(self.ool) - nool0

    def final(self, fin):
        a = self.a
        a("s_waitcnt vmcnt(0)")
        if self.flags:
            for g in self.flag_groups():
                for x in g: a(x)
        if self.stamps: a(f"s_branch {fin}")
        else: a("s_endpgm")

    def backedge(self, loop):
        a = self.a
        if not self.flags:
            a(f"s_branch {loop}"); return
        a(f"s_add_u32 s{self.sT}, s{self.sSTEP}, 2\ns_cmp_lt_u32 s{self.sT}, s{self.sUPTO}\ns_cbranch_scc1 {loop}")
        self.ready_slow(a.newlabel('Lrs'), loop, 2)

    def emit_prework(self):
        a = self.a
        for t in self._prework_text: a(t)

    def body(self, dbg_off):
        a = self.a
        rtstamp(a, 0)
        self.dbg_off = dbg_off
        self.early_issue()
        self.setup(); self.announce(dbg_off); self.comm_init()
        a(f"s_mov_b32 s{self.sSTEP}, 0\ns_mov_b32 s{self.sUPTO}, 0\ns_mov_b32 s{self.sSPIN}, 0")
        rtstamp(a, 1)
        self.load_weights()
        rtstamp(a, 2); rtstamp(a, 3); rtstamp(a, 4)
        if self.stamps:
            for i in range(8): a(f"s_mov_b32 s{6+i}, 0")
            a("s_memtime s[14:15]\ns_waitcnt lgkmcnt(0)")
        done, remote, fin = a.newlabel('Ldone'), a.newlabel('Lremote'), a.newlabel('Lfin')
        def dry(wv):
            real = self.a; self.a = Asm(); self.step(0, done, done, wv); self.ool = self.ool[:len(self.ool) - self._nool]; self.a = real
        if self.flags:
            a(f"v_cmp_le_u32 s[{self.sRDY}:{self.sRDY+1}], 32, v{FLG}")
            a(f"s_ff0_i32_b64 s{self.sUPTO}, s[{self.sRDY}:{self.sRDY+1}]")
            self.ready_check(2)
        a(f"s_cmp_lg_u32 s{S_LOCAL}, 1\ns_cbranch_scc1 {remote}")
        self.flavor = ''
        a.label("Lrec_local")
        pend = self.ool; self.ool = []
        if self.SPECIAL:
            wl = [a.newlabel('Lrw') for _ in range(4)]
            for wv in range(1, 4): a(f"s_cmp_eq_u32 s{S_WAVE}, {wv}\ns_cbranch_scc1 {wl[wv]}")
        for wv in (range(4) if self.SPECIAL else [None]):
            if self.SPECIAL: a.label(wl[wv])
            dry(wv); self.emit_prework()
            loop, dn = a.newlabel('Lrec'), a.newlabel('Ldn')
            if self.ALIGN: a.raw(f".p2align {self.ALIGN}")
            a.label(loop)
            self.step(0, dn, dn, wv)
            self.step(1, dn, dn, wv)
            self.backedge(loop)
            a.label(dn)
            self.final(fin)
            for f in self.ool: f()
            self.ool = []
        self.flavor = ' sc1'
        a.label(remote)
        dry(None); self.emit_prework()
        loop = a.newlabel('Lrec')
        a.label(loop)
        self.step(0, done, done)
        self.step(1, done, done)
        self.backedge(loop)
        a.label(done)
        self.final(fin)
        for f in self.ool + pend: f()
        self.ool = []
        a.label(fin)
        rtstamp(a, 5)
        if self.stamps and self.PERSTEP:
            a(f"s_lshl_b32 s100, s{S_WAVE}, 9\ns_add_u32 s100, s100, 30720\nv_lshrrev_b32 v{T0}, 1, v{L16}\nv_add_u32 v{T1}, s100, v{T0}")
            a(f"ds_read_b64 v[{XF}:{XF+1}], v{T1}\ns_waitcnt lgkmcnt(0)")
            a(f"s_lshl_b32 s100, s{S_RANK}, 2\ns_add_u32 s100, s100, s{S_WAVE}\ns_lshl_b32 s100, s100, 9\ns_add_u32 s100, s100, {OFF_TRACE + 0x100000}\nv_add_u32 v{T0}, s100, v{T0}")
            a(f"global_store_dwordx2 v{T0}, v[{XF}:{XF+1}], s[{S_WS}:{S_WS+1}]")
        if self.stamps:
            T = self.sT
            a(f"s_memtime s[{T}:{T+1}]\ns_waitcnt lgkmcnt(0)\ns_sub_u32 s13, s{T}, s14")
            a(f"s_lshl_b32 s{T}, s{S_RANK}, 2\ns_add_u32 s{T}, s{T}, s{S_WAVE}\ns_lshl_b32 s{T}, s{T}, 6\ns_add_u32 s{T}, s{T}, {OFF_TRACE}\nv_mov_b32 v1, s{T}")
            for i in range(8): a(f"v_mov_b32 v{16+i}, s{6+i}")
            a(f"v_mov_b32 v24, s{self.sSTEP}")
            a("s_mov_b64 exec, 1")
            a(f"global_store_dwordx4 v1, v[16:19], s[{S_WS}:{S_WS+1}]\nglobal_store_dwordx4 v1, v[20:23], s[{S_WS}:{S_WS+1}] offset:16\nglobal_store_dword v1, v24, s[{S_WS}:{S_WS+1}] offset:32")
            a("s_waitcnt vmcnt(0)")
```

```python
import gen_merged as g
from rec5 import Rec5
names = []
V = {"s": dict(), "p": dict(PWEARLY=True, PB0=['s_waitcnt vmcnt(1)'])}
for k, v in V.items():
    for kk, vv in v.items(): setattr(Rec5, kk, vv)
    n = f"scan_{k}.s"
    open("../" + n, "w").write(g.build())
    open("../" + n.replace(".s", "_st.s"), "w").write(g.build(stamps=True))
    names.append(n)
print(" ".join(names))
```
